```python
import torch

def _softmax(x, axis=-1):
    return torch.softmax(x, dim=axis)
def _gelu(x):
    return torch.nn.functional.gelu(x, approximate="tanh")
def _silu(x):
    return torch.nn.functional.silu(x)
def _sigmoid(x):
    return torch.sigmoid(x)
def _layernorm(x, axis=-1, eps=1e-5):
    m = x.mean(dim=axis, keepdim=True)
    v = x.var(dim=axis, keepdim=True, unbiased=False)
    return (x - m) / torch.sqrt(v + eps)
def _scatter_add(tgt, idx, src, axis=0):
    return tgt.clone().index_add_(axis, idx, src)
def _segment_sum(src, seg, n):
    out = torch.zeros((n,) + src.shape[1:], dtype=src.dtype)
    return out.index_add_(0, seg, src)
def _pad(x, pw):
    flat = tuple(v for pair in reversed(pw) for v in pair)
    return torch.nn.functional.pad(x, flat)

kernel_name = 'gather_scatter__mpnn_edge_mlp__graph'

def setup_inputs():

    _w = (lambda a: (lambda t: t.to(torch.bfloat16) if t.is_floating_point() else t)(torch.as_tensor(a)))
    N, deg, D, De = 12500, 32, 128, max(4, 1)
    E = N * deg
    return {
        "x": _w((lambda *s: torch.randn(*s, dtype=torch.bfloat16) * 0.05)(N, D)),
        "e_attr": _w((lambda *s: torch.randn(*s, dtype=torch.bfloat16) * 0.4)(E, De)),
        "src": _w((lambda lo, hi, *s: torch.randint(lo, hi, s))(0, N, E).to(torch.int64)),
        "dst": _w((lambda lo, hi, *s: torch.randint(lo, hi, s))(0, N, E).to(torch.int64)),
        "w_msg": _w((lambda *s: torch.randn(*s, dtype=torch.bfloat16) * 0.4)(2 * D + De, D)),
        "w_upd": _w((lambda *s: torch.randn(*s, dtype=torch.bfloat16) * 0.05)(2 * D, D)),
    }

def reference(x, e_attr, src, dst, w_msg, w_upd):
    N, D = x.shape
    m_in = torch.concatenate([x[src], x[dst], e_attr], axis=-1)
    msg = _silu(m_in @ w_msg)
    agg = _segment_sum(msg, dst, N)
    return _silu(torch.concatenate([x, agg], axis=-1) @ w_upd)
```

```python
import sys
ROUNDP = int(sys.argv[1]) if len(sys.argv) > 1 else 1
hdr = open('gather_scatter__mpnn_edge_mlp__graph.s.ref').read().split('; Override launch')[0]
o = []
A = o.append
A(hdr.rstrip())
A('; @launch kernel=prep_kernel grid=(12500,1,1) block=(128,1,1) lds=0')
A('; @launch kernel=edge_kernel grid=(400000,1,1) block=(128,1,1) lds=0')
A('; @launch kernel=gather_scatter__mpnn_edge_mlp__graph_kernel grid=(12500,1,1) block=(128,1,1) lds=512')
A('.amdgcn_target "amdgcn-amd-amdhsa--gfx950"')
A('.text')
def srd(d, b, n):
    A(f's_mov_b32 s{d}, s{b}'); A(f's_mov_b32 s{d+1}, s{b+1}'); A(f's_mov_b32 s{d+2}, {n}'); A(f's_mov_b32 s{d+3}, 0x00020000')
def start(name):
    A(f'.globl {name}'); A('.p2align 8'); A(f'.type {name},@function'); A(f'{name}:')
NB = 12500*128*4
start('prep_kernel')
A('s_cmp_ge_u32 s2, 12500'); A('s_cbranch_scc1 prep_end')
A('s_load_dwordx2 s[4:5], s[0:1], 0')
A('s_load_dwordx2 s[6:7], s[0:1], 32')
A('s_load_dwordx2 s[8:9], s[0:1], 40')
A('s_load_dwordx2 s[10:11], s[0:1], 64')
A('s_waitcnt lgkmcnt(0)')
srd(12, 6, 260*256); srd(16, 8, 256*256); srd(20, 10, 4*NB)
A('s_lshl_b32 s3, s2, 8')
A('s_add_u32 s4, s4, s3'); A('s_addc_u32 s5, s5, 0')
for i in range(4):
    A(f's_load_dwordx16 s[{32+16*i}:{47+16*i}], s[4:5], {64*i}')
A('v_lshlrev_b32 v1, 1, v0')
A('v_mov_b32 v2, 0'); A('v_mov_b32 v3, 0'); A('v_mov_b32 v4, 0')
A('s_waitcnt lgkmcnt(0)')
for k in range(128):
    A(f's_mov_b32 s24, {k*256}'); A(f's_mov_b32 s25, {(128+k)*256}')
    A('buffer_load_ushort v5, v1, s[12:15], s24 offen')
    A('buffer_load_ushort v6, v1, s[12:15], s25 offen')
    A('buffer_load_ushort v7, v1, s[16:19], s24 offen')
    if k % 2 == 0: A(f's_lshl_b32 s26, s{32+k//2}, 16')
    else: A(f's_and_b32 s26, s{32+k//2}, 0xffff0000')
    A('s_waitcnt vmcnt(0)')
    A('v_lshlrev_b32 v5, 16, v5'); A('v_lshlrev_b32 v6, 16, v6'); A('v_lshlrev_b32 v7, 16, v7')
    A('v_fma_f32 v2, v5, s26, v2'); A('v_fma_f32 v3, v6, s26, v3'); A('v_fma_f32 v4, v7, s26, v4')
A('s_mov_b32 s26, 0xbfb8aa3b')
A('v_mul_f32 v2, s26, v2'); A('v_mul_f32 v3, s26, v3')
if ROUNDP >= 1:
    A('v_cvt_pk_bf16_f32 v2, v2, v2'); A('v_and_b32 v2, 0xffff0000, v2')
if ROUNDP >= 2:
    A('v_cvt_pk_bf16_f32 v3, v3, v3'); A('v_and_b32 v3, 0xffff0000, v3')
    A('v_cvt_pk_bf16_f32 v4, v4, v4'); A('v_and_b32 v4, 0xffff0000, v4')
A('v_lshlrev_b32 v1, 2, v0')
A('s_lshl_b32 s24, s2, 9')
A('buffer_store_dword v2, v1, s[20:23], s24 offen')
A(f's_add_u32 s24, s24, {NB}')
A('buffer_store_dword v3, v1, s[20:23], s24 offen')
A(f's_add_u32 s24, s24, {NB}')
A('buffer_store_dword v4, v1, s[20:23], s24 offen')
A(f's_add_u32 s24, s24, {NB}')
A('v_mov_b32 v5, 0')
A('buffer_store_dword v5, v1, s[20:23], s24 offen')
A('s_waitcnt vmcnt(0)')
A('prep_end:'); A('s_endpgm')
start('edge_kernel')
A('s_cmp_ge_u32 s2, 400000'); A('s_cbranch_scc1 edge_end')
A('s_load_dwordx2 s[4:5], s[0:1], 8')
A('s_load_dwordx2 s[6:7], s[0:1], 16')
A('s_load_dwordx2 s[8:9], s[0:1], 24')
A('s_load_dwordx2 s[10:11], s[0:1], 64')
A('s_load_dwordx2 s[24:25], s[0:1], 32')
A('s_waitcnt lgkmcnt(0)')
srd(12, 24, 260*256); srd(20, 10, 4*NB)
A('s_lshl_b32 s3, s2, 3'); A('s_lshl_b32 s26, s2, 2')
A('s_load_dwordx2 s[28:29], s[4:5], s3')
A('s_load_dword s30, s[6:7], s26')
A('s_load_dword s31, s[8:9], s26')
A('v_lshlrev_b32 v1, 1, v0'); A('v_lshlrev_b32 v2, 2, v0')
for d in range(4):
    A(f's_mov_b32 s32, {(256+d)*256}')
    A(f'buffer_load_ushort v{10+d}, v1, s[12:15], s32 offen')
A('s_waitcnt lgkmcnt(0)')
A('s_lshl_b32 s30, s30, 9'); A('s_lshl_b32 s31, s31, 9')
A('buffer_load_dword v3, v2, s[20:23], s30 offen')
A(f's_add_u32 s33, s31, {NB}')
A('buffer_load_dword v4, v2, s[20:23], s33 offen')
A('s_lshl_b32 s34, s28, 16'); A('s_and_b32 s35, s28, 0xffff0000'); A('s_lshl_b32 s36, s29, 16'); A('s_and_b32 s37, s29, 0xffff0000')
A('s_mov_b32 s38, 0xbfb8aa3b')
A('s_waitcnt vmcnt(0)')
A('v_add_f32 v3, v3, v4')
for d in range(4):
    A(f'v_lshlrev_b32 v{10+d}, 16, v{10+d}')
    A(f'v_mul_f32 v{10+d}, s38, v{10+d}')
    if ROUNDP >= 1:
        A(f'v_cvt_pk_bf16_f32 v{10+d}, v{10+d}, v{10+d}'); A(f'v_and_b32 v{10+d}, 0xffff0000, v{10+d}')
    A(f'v_fma_f32 v3, v{10+d}, s{34+d}, v3')
A('v_exp_f32 v4, v3'); A('s_nop 1'); A('v_add_f32 v4, 1.0, v4'); A('v_rcp_f32 v4, v4'); A('s_nop 1'); A('v_mul_f32 v3, v3, v4')
A(f's_add_u32 s33, s31, {3*NB}')
A('buffer_atomic_add_f32 v3, v2, s[20:23], s33 offen')
A('s_waitcnt vmcnt(0)')
A('edge_end:'); A('s_endpgm')
start('gather_scatter__mpnn_edge_mlp__graph_kernel')
A('s_cmp_ge_u32 s2, 12500'); A('s_cbranch_scc1 out_end')
A('s_load_dwordx2 s[4:5], s[0:1], 40')
A('s_load_dwordx2 s[6:7], s[0:1], 48')
A('s_load_dwordx2 s[10:11], s[0:1], 64')
A('s_waitcnt lgkmcnt(0)')
srd(12, 4, 256*256); srd(16, 6, 12500*256); srd(20, 10, 4*NB)
A('v_lshlrev_b32 v1, 1, v0'); A('v_lshlrev_b32 v2, 2, v0')
A('s_lshl_b32 s24, s2, 9'); A(f's_add_u32 s25, s24, {2*NB}'); A(f's_add_u32 s26, s24, {3*NB}')
A('buffer_load_dword v3, v2, s[20:23], s25 offen')
A('buffer_load_dword v4, v2, s[20:23], s26 offen')
A('s_mov_b32 s27, 0xbf317218')
A('s_waitcnt vmcnt(0)')
A('v_mul_f32 v4, s27, v4')
A('v_cvt_pk_bf16_f32 v4, v4, v4'); A('v_and_b32 v4, 0xffff0000, v4')
A('ds_write_b32 v2, v4'); A('s_waitcnt lgkmcnt(0)'); A('s_barrier')
A('v_mov_b32 v8, 0')
for k in range(128):
    A(f's_mov_b32 s28, {(128+k)*256}')
    A('buffer_load_ushort v5, v1, s[12:15], s28 offen')
    A(f'ds_read_b32 v6, v8 offset:{k*4}')
    A('s_waitcnt vmcnt(0) lgkmcnt(0)')
    A('v_lshlrev_b32 v5, 16, v5')
    A('v_fma_f32 v3, v5, v6, v3')
A('s_mov_b32 s27, 0xbfb8aa3b')
A('v_mul_f32 v4, s27, v3'); A('v_exp_f32 v4, v4'); A('s_nop 1'); A('v_add_f32 v4, 1.0, v4'); A('v_rcp_f32 v4, v4'); A('s_nop 1'); A('v_mul_f32 v3, v3, v4')
A('v_cvt_pk_bf16_f32 v3, v3, v3')
A('s_lshl_b32 s24, s2, 8')
A('buffer_store_short v3, v1, s[16:19], s24 offen')
A('s_waitcnt vmcnt(0)')
A('out_end:'); A('s_endpgm')
A('.section .rodata,"a"')
for name in ('prep_kernel', 'edge_kernel', 'gather_scatter__mpnn_edge_mlp__graph_kernel'):
    A('.p2align 6')
    A(f'.amdhsa_kernel {name}')
    A('  .amdhsa_next_free_vgpr 32'); A('  .amdhsa_next_free_sgpr 102'); A('  .amdhsa_accum_offset 32')
    A('  .amdhsa_group_segment_fixed_size 0'); A('  .amdhsa_kernarg_size 72'); A('  .amdhsa_user_sgpr_count 2')
    A('  .amdhsa_user_sgpr_kernarg_segment_ptr 1'); A('  .amdhsa_system_sgpr_workgroup_id_x 1')
    A('.end_amdhsa_kernel')
print('\n'.join(o))
```

```python
import re

TRANS = ('v_exp_', 'v_log_', 'v_rcp_', 'v_rsq_', 'v_sqrt_', 'v_sin_', 'v_cos_')

def _regs(tok):
    tok = tok.strip()
    tok = re.sub(r'^-|^\||\|$', '', tok)
    tok = tok.strip('|')
    m = re.match(r'^(abs|neg)\((.*)\)$', tok)
    if m: tok = m.group(2)
    m = re.match(r'^([vsa])(\d+)$', tok)
    if m: return {(m.group(1), int(m.group(2)))}
    m = re.match(r'^([vsa])\[(\d+):(\d+)\]$', tok)
    if m: return {(m.group(1), i) for i in range(int(m.group(2)), int(m.group(3)) + 1)}
    if tok == 'vcc': return {('s', 106), ('s', 107)}
    if tok == 'vcc_lo': return {('s', 106)}
    if tok == 'vcc_hi': return {('s', 107)}
    if tok == 'exec': return {('s', 126), ('s', 127)}
    if tok == 'exec_lo': return {('s', 126)}
    if tok == 'exec_hi': return {('s', 127)}
    if tok == 'm0': return {('s', 124)}
    return set()

VCC = {('s', 106), ('s', 107)}
EXEC = {('s', 126), ('s', 127)}

class Ins:
    def __init__(self, text):
        self.text = text
        t = text.split(';')[0].strip()
        self.label = None
        self.op = None
        if t.endswith(':'):
            self.label = t[:-1]; return
        if not t or t.startswith('.'):
            return
        parts = t.split(None, 1)
        self.op = op = parts[0]
        rest = parts[1] if len(parts) > 1 else ''
        ops = []; cur = ''; depth = 0
        for ch in rest:
            if ch == '[': depth += 1
            if ch == ']': depth -= 1
            if ch == ',' and depth == 0: ops.append(cur); cur = ''
            else: cur += ch
        if cur.strip(): ops.append(cur)
        mods = ''
        if ops:
            last = ops[-1].strip().split(None, 1)
            ops[-1] = last[0]
            if len(last) > 1: mods = last[1]
        self.ops = [o.strip() for o in ops]; self.mods = mods
        self.valu = op.startswith('v_') and not op.startswith('v_mfma')
        self.mfma = op.startswith('v_mfma')
        self.vmem = op.startswith(('buffer_', 'global_', 'flat_'))
        self.ds = op.startswith('ds_')
        self.salu = op.startswith('s_')
        self.trans = op.startswith(TRANS)
        self.dpp = ('dpp' in op) or any(k in mods for k in ('row_shr', 'row_shl', 'row_bcast', 'quad_perm', 'row_ror', 'wave_', 'row_mirror', 'row_half_mirror', 'row_newbcast'))
        self.sdwa = 'sdwa' in op or 'dst_sel' in mods
        R = [_regs(o) for o in self.ops]
        self.dst = set(); self.src = set(); self.srcC = set(); self.sdata = set()
        if self.valu or self.mfma:
            if op.startswith('v_cmpx'):
                self.dst = R[0] | EXEC; self.src = set().union(*R[1:])
            elif op.startswith(('v_permlane16_swap', 'v_permlane32_swap', 'v_swap')):
                self.dst = R[0] | R[1]; self.src = R[0] | R[1]
            elif re.match(r'v_(add|sub|subrev|addc|subb|subbrev)_co', op) or op.startswith(('v_div_scale', 'v_mad_u64_u32', 'v_mad_i64_i32')):
                self.dst = R[0] | R[1]; self.src = set().union(*R[2:])
            else:
                self.dst = R[0]; self.src = set().union(*R[1:]) if len(R) > 1 else set()
                if op.startswith(('v_fmac', 'v_mac', 'v_pk_fmac', 'v_dot2c', 'v_writelane')) or self.dpp or self.sdwa: self.src |= R[0]
                if op.startswith('v_cndmask') and len(R) == 3: self.src |= VCC
            if self.mfma: self.srcC = R[3]
        elif self.vmem:
            if 'load' in op and 'lds' not in mods.split():
                self.dst = R[0]; self.src = set().union(*R[1:])
            elif 'atomic' in op and 'sc0' in mods.split():
                self.dst = R[0]; self.src = set().union(*R)
            else:
                self.src = set().union(*R)
                if re.search(r'store_dwordx[34]', op):
                    self.sdata = R[0] if op.startswith('buffer_') else R[1]
        elif self.ds:
            if op.startswith(('ds_read', 'ds_bpermute', 'ds_permute', 'ds_swizzle')) or '_rtn' in op:
                self.dst = R[0]; self.src = set().union(*R[1:])
            else:
                self.src = set().union(*R)
        elif self.salu:
            if op.startswith(('s_cmp', 's_cbranch', 's_branch', 's_waitcnt', 's_nop', 's_barrier', 's_endpgm', 's_setprio', 's_sleep', 's_bitcmp')):
                self.src = set().union(*R) if R else set()
            else:
                self.dst = R[0] if R else set(); self.src = set().union(*R[1:]) if len(R) > 1 else set()
                if 'saveexec' in op: self.dst |= EXEC
        self.passes = 0
        if self.mfma:
            self.passes = 8 if '32x32x16' in op or '16x16x4_f32' in op else 4
    def states(self):
        if self.op is None: return 0
        if self.op == 's_nop': return int(self.ops[0]) + 1
        return 1

def vonly(s): return {r for r in s if r[0] in 'va'}
def sonly(s): return {r for r in s if r[0] == 's'}

def required(p, c):
    n = 0
    if p.valu:
        if c.mfma and vonly(p.dst) & c.src: n = max(n, 2)
        if c.mfma and p.dst & EXEC: n = max(n, 4)
        if p.trans and c.valu and not c.trans and vonly(p.dst) & c.src: n = max(n, 1)
        if p.trans and (c.ds or c.vmem) and vonly(p.dst) & c.src: n = max(n, 1)
        if c.vmem and sonly(p.dst) & c.src: n = max(n, 5)
        if c.valu and (sonly(p.dst) - EXEC) & c.src:
            n = max(n, 4 if c.op.startswith(('v_readlane', 'v_writelane')) else 2)
        if c.valu and (p.dst & EXEC) and (c.src & EXEC): n = max(n, 2)
        if c.op.startswith(('v_readlane', 'v_readfirstlane', 'v_writelane', 'v_permlane')) and p.dst & EXEC: n = max(n, 4)
        if c.op.startswith(('v_readlane', 'v_readfirstlane')) and vonly(p.dst) & c.src: n = max(n, 1)
        if c.valu and c.dpp and vonly(p.dst) & c.src: n = max(n, 2)
        if c.valu and c.dpp and p.dst & EXEC: n = max(n, 5)
        if c.op.startswith('v_permlane') and vonly(p.dst) & c.src: n = max(n, 2)
        if (p.sdwa or 'op_sel' in p.mods and not p.op.startswith('v_pk')) and c.valu and vonly(p.dst) & (c.src | c.dst): n = max(n, 1)
    if p.mfma:
        big = {4: 8, 8: 12}[p.passes]
        if (c.valu or c.vmem or c.ds) and p.dst & (c.src | c.dst): n = max(n, big)
        if c.mfma:
            ab = c.src - c.srcC
            if p.dst & ab: n = max(n, big)
            if p.dst & c.srcC and not (p.dst == c.srcC and p.passes == c.passes): n = max(n, big - 2)
        if c.valu and p.srcC & c.dst: n = max(n, {4: 3, 8: 7}[p.passes])
    if p.vmem and p.sdata:
        if c.valu and p.sdata & c.dst: n = max(n, 2)
        elif (c.vmem or c.ds or c.mfma) and p.sdata & c.dst: n = max(n, 1)
    if p.salu and ('s', 124) in p.dst and ((c.vmem and 'lds' in c.mods.split()) or (c.ds and 'addtid' in c.op)): n = max(n, 1)
    return n

MAXW = 12
def pad_hazards(lines):
    ins = [Ins(l) for l in lines]
    changed = True; total = 0
    while changed:
        changed = False
        lab = {x.label: i for i, x in enumerate(ins) if x.label}
        br = {}
        for i, x in enumerate(ins):
            if x.op and (x.op.startswith('s_cbranch') or x.op == 's_branch'):
                br.setdefault(lab[x.ops[0]], []).append(i)
        def preds(i):
            out = []
            if i > 0:
                p = ins[i - 1]
                if not (p.op in ('s_branch', 's_endpgm')): out.append(i - 1)
            out += br.get(i, [])
            return out
        for i, c in enumerate(ins):
            if c.op is None or c.salu: continue
            need = 0
            stack = [(j, 0) for j in preds(i)]
            seen = {}
            while stack:
                j, d = stack.pop()
                if seen.get(j, 99) <= d: continue
                seen[j] = d
                p = ins[j]
                if p.op is not None:
                    r = required(p, c)
                    if r > d: need = max(need, r - d)
                nd = d + p.states()
                if nd < MAXW:
                    stack += [(k, nd) for k in preds(j)]
            if need:
                ins.insert(i, Ins(f's_nop {need - 1}'))
                total += need
                changed = True
                break
    return [x.text for x in ins], total

class Asm:
    def __init__(self):
        self.o = []
    def __call__(self, s):
        for l in s.split('\n'):
            l = l.strip()
            if l: self.o.append(l)
    def srd(self, d, b, n, off=0, w3='0x00020000', stride=0):
        if off:
            self(f's_add_u32 s{d}, s{b}, {off}'); self(f's_addc_u32 s{d+1}, s{b+1}, 0')
        else:
            self(f's_mov_b32 s{d}, s{b}'); self(f's_mov_b32 s{d+1}, s{b+1}')
        if stride: self(f's_or_b32 s{d+1}, s{d+1}, {stride << 16}')
        self(f's_mov_b32 s{d+2}, {n}'); self(f's_mov_b32 s{d+3}, {w3}')
    def start(self, name):
        self(f'.globl {name}'); self('.p2align 8'); self(f'.type {name},@function'); self(f'{name}:')

def kdesc(name, vgpr, extra=''):
    acc = (vgpr + 3) // 4 * 4
    return f""".p2align 6
.amdhsa_kernel {name}
  .amdhsa_next_free_vgpr {vgpr}
  .amdhsa_next_free_sgpr 102
  .amdhsa_accum_offset {acc}
  .amdhsa_group_segment_fixed_size 0
  .amdhsa_kernarg_size 72
  .amdhsa_user_sgpr_count 2
  .amdhsa_user_sgpr_kernarg_segment_ptr 1
  .amdhsa_system_sgpr_workgroup_id_x 1
{extra}.end_amdhsa_kernel"""


def stamp(A, opt, i):
    if opt.get('stamp'):
        A(f's_memrealtime s[{64+2*i}:{65+2*i}]')

def stamp_end(A, opt, i, wsreg, off):
    if not opt.get('stamp'): return
    A('s_waitcnt vmcnt(0)')
    A(f's_memrealtime s[{64+2*i}:{65+2*i}]')
    A.srd(84, wsreg, 1 << 18, off=off)
    A('s_mov_b64 exec, -1')
    A('v_lshrrev_b32 v120, 6, v0')
    A('v_readfirstlane_b32 s88, v120')
    A('s_lshl_b32 s89, s2, 4'); A('s_add_u32 s88, s88, s89'); A('s_lshl_b32 s88, s88, 5')
    A('s_waitcnt lgkmcnt(0)')
    for k in range(8): A(f'v_mov_b32 v{120+k}, s{64+2*k}')
    A('s_mov_b64 exec, 1')
    A('buffer_store_dwordx4 v[120:123], off, s[84:87], s88')
    A('buffer_store_dwordx4 v[124:127], off, s[84:87], s88 offset:16')

import struct
def f32hex(x): return '0x%08x' % struct.unpack('<I', struct.pack('<f', x))[0]
```

```python
N = 12500; E = 400000
NB = 256; BS = 49; NCH = 128; CH = 3128
CHB = 37632
MAGIC = 21400
NGEMM = 98; PROWS = NGEMM * 128
K1_WGS = NCH + NGEMM + 3
K1_LDS = 65536
WS_P = 0
WS_FR = 0x320000
WS_MAXT = 0x340000
MAXT_BYTES = (NCH + NGEMM) * 32
WS_TAB = 0x350000
WS_STAMP = 0x380000
WS_STAMP2 = 0x3c0000
WS_REC = 0x400000
NLOG2E = '0xbfb8aa3b'
NLN2 = '0xbf317218'
TP = '4.0'
TQ = 5.0
TE = 21.0
ZROW = 12500
DPPS = ('row_shr:1', 'row_shr:2', 'row_shr:4', 'row_shr:8', 'row_bcast:15 row_mask:0xa', 'row_bcast:31 row_mask:0xc')
K2_NSTAMP = 12; K2_LOOPEND = 9
```

```python
from asmlib import *
from consts import *

def emit_k1(A, opt):
    st = opt.get('k1_store_mods', '')
    A.start('k1_kernel')
    A(f's_cmp_ge_u32 s2, {K1_WGS}'); A('s_cbranch_scc1 k1_end')
    A('s_load_dwordx4 s[4:7], s[0:1], 0')
    A('s_load_dwordx4 s[8:11], s[0:1], 16')
    A('s_load_dwordx4 s[12:15], s[0:1], 32')
    A('s_load_dwordx2 s[16:17], s[0:1], 64')
    stamp(A, opt, 0)
    A(f's_cmp_ge_u32 s2, {NCH}'); A('s_cbranch_scc1 k1_gemm')
    A('v_lshlrev_b32 v1, 2, v0')
    A('v_mov_b32 v2, 0')
    A('ds_write_b32 v1, v2')
    A(f's_mul_i32 s3, s2, {CH}')
    A(f's_sub_u32 s18, {E}, s3'); A(f's_min_u32 s18, s18, {CH}')
    A('v_lshlrev_b32 v2, 4, v0')
    A('v_lshlrev_b32 v3, 5, v0')
    A('v_and_b32 v52, 63, v0')
    A('v_lshlrev_b32 v52, 4, v52')
    A('s_lshl_b32 s19, s3, 2'); A('s_lshl_b32 s20, s3, 3')
    for i in range(4): A(f'v_mov_b64 v[{12+2*i}:{13+2*i}], 0')
    A(f's_mul_i32 s43, s2, {CHB}')
    A('s_waitcnt lgkmcnt(0)')
    stamp(A, opt, 1)
    A.srd(24, 10, E * 4); A.srd(28, 8, E * 4); A.srd(32, 6, E * 8)
    A.srd(36, 16, NCH * CHB, off=WS_REC)
    A('v_cmp_gt_u32 vcc, s18, v1')
    A('s_and_saveexec_b64 s[22:23], vcc')
    A('s_cbranch_execz k1_bin_idle')
    A('buffer_load_dwordx4 v[4:7], v2, s[24:27], s19 offen')
    A('buffer_load_dwordx4 v[8:11], v2, s[28:31], s19 offen')
    A('buffer_load_dwordx4 v[12:15], v3, s[32:35], s20 offen')
    A('buffer_load_dwordx4 v[16:19], v3, s[32:35], s20 offen offset:16')
    A(f's_mov_b32 s40, {MAGIC}'); A(f's_mov_b32 s41, -{BS}')
    A('v_mov_b32 v31, 12')
    A('s_mov_b64 s[22:23], exec')
    A('s_barrier')
    A('s_waitcnt vmcnt(3)')
    stamp(A, opt, 2)
    for i in range(4):
        A(f'v_mul_u32_u24 v{32+i}, s40, v{4+i}')
    for i in range(4):
        A(f'v_lshrrev_b32 v{32+i}, 20, v{32+i}')
    for i in range(4):
        A(f'v_lshlrev_b32 v{36+i}, 2, v{32+i}')
        A(f'ds_add_rtn_u32 v{40+i}, v{36+i}, v31')
    for i in range(4):
        A(f'v_mad_i32_i24 v{4+i}, v{32+i}, s41, v{4+i}')
        A(f'v_bfe_i32 v{32+i}, v{4+i}, 0, 3')
        A(f'v_and_b32 v{32+i}, 15, v{32+i}')
        A(f'v_lshl_or_b32 v{4+i}, v{4+i}, 4, v{32+i}')
    A('s_waitcnt lgkmcnt(0)')
    A('s_barrier')
    stamp(A, opt, 3)
    A('s_mov_b64 exec, -1')
    def scan():
        A('ds_read_b128 v[44:47], v52')
        A('s_waitcnt lgkmcnt(0)')
        A('v_add_u32 v49, v44, v45')
        A('v_add_u32 v50, v49, v46')
        A('v_add_u32 v51, v50, v47')
        A('v_mov_b32 v48, v51')
        for sh in ('row_shr:1', 'row_shr:2', 'row_shr:4', 'row_shr:8', 'row_bcast:15 row_mask:0xa', 'row_bcast:31 row_mask:0xc'):
            A(f'v_add_u32_dpp v48, v48, v48 {sh}')
        A('v_sub_u32 v48, v48, v51')
        A('v_add_u32 v51, v48, v50')
        A('v_add_u32 v50, v48, v49')
        A('v_add_u32 v49, v48, v44')
    scan()
    A('ds_write_b128 v52, v[48:51] offset:1024')
    A('s_mov_b64 exec, s[22:23]')
    for i in range(4):
        A(f'ds_read_b32 v{36+i}, v{36+i} offset:1024')
    A('s_waitcnt vmcnt(2)')
    for i in range(4):
        A(f'v_lshl_or_b32 v{4+i}, v{4+i}, 20, v{8+i}')
    A('s_waitcnt lgkmcnt(0)')
    for i in range(4):
        A(f'v_add_u32 v{40+i}, v{40+i}, v{36+i}')
        A(f'ds_write_b32 v{40+i}, v{4+i} offset:2056')
    A('s_waitcnt vmcnt(0)')
    for i in range(4):
        A(f'v_add_u32 v{40+i}, 0x800, v{40+i}')
        A(f'ds_write2_b32 v{40+i}, v{12+2*i}, v{13+2*i} offset1:1')
    A('s_mov_b64 exec, -1')
    A('s_waitcnt lgkmcnt(0)')
    stamp(A, opt, 4)
    A('s_branch k1_bin_join')
    A('k1_bin_idle:')
    A('s_mov_b64 exec, -1')
    A('s_barrier')
    A('s_barrier')
    A('v_cmp_lt_u32 vcc, 959, v0')
    A('s_cbranch_vccz k1_bin_join')
    scan()
    A.srd(24, 16, NCH * 1024, off=WS_TAB)
    A('s_lshl_b32 s19, s2, 10')
    for i in range(4):
        A(f'v_lshl_or_b32 v{48+i}, v{44+i}, 16, v{48+i}')
    A(f'buffer_store_dwordx4 v[48:51], v52, s[24:27], s19 offen {st}')
    A('k1_bin_join:')
    A('s_barrier')
    stamp(A, opt, 5)
    A('ds_read_b128 v[4:7], v2 offset:2048')
    A('ds_read_b128 v[8:11], v2 offset:18432')
    A('s_add_u32 s44, s43, 16384'); A('s_add_u32 s45, s43, 32768')
    A(f'v_cmp_gt_u32 vcc, {(CH*12-32768)//16}, v0')
    A('s_cbranch_vccz k1_bin_two')
    A('s_mov_b64 exec, vcc')
    A('ds_read_b128 v[20:23], v2 offset:34816')
    A('s_waitcnt lgkmcnt(0)')
    A(f'buffer_store_dwordx4 v[20:23], v2, s[36:39], s45 offen {st}')
    A('s_mov_b64 exec, -1')
    A('k1_bin_two:')
    A('s_waitcnt lgkmcnt(1)')
    A(f'buffer_store_dwordx4 v[4:7], v2, s[36:39], s43 offen {st}')
    A('s_waitcnt lgkmcnt(0)')
    A(f'buffer_store_dwordx4 v[8:11], v2, s[36:39], s44 offen {st}')
    A('s_mov_b32 s40, 0x7fff7fff')
    for i in range(8): A(f'v_and_b32 v{12+i}, s40, v{12+i}')
    for i in range(4): A(f'v_pk_max_u16 v{12+i}, v{12+i}, v{16+i}')
    A('v_pk_max_u16 v12, v12, v13'); A('v_pk_max_u16 v14, v14, v15'); A('v_pk_max_u16 v12, v12, v14')
    A('v_max_u32_sdwa v12, v12, v12 dst_sel:DWORD dst_unused:UNUSED_PAD src0_sel:WORD_0 src1_sel:WORD_1')
    for sh in DPPS: A(f'v_max_u32_dpp v12, v12, v12 {sh}')
    A.srd(28, 16, MAXT_BYTES, off=WS_MAXT)
    A('v_lshrrev_b32 v13, 5, v0'); A('v_and_b32 v13, 30, v13')
    A('s_lshl_b32 s23, s2, 5')
    A('s_mov_b32 exec_lo, 0'); A('s_mov_b32 exec_hi, 0x80000000')
    A('buffer_store_short v12, v13, s[28:31], s23 offen')
    stamp_end(A, opt, 6, 16, WS_STAMP)
    A('s_endpgm')
    A('k1_gemm:')
    A(f's_sub_u32 s3, s2, {NCH}')
    A('v_lshlrev_b32 v1, 4, v0')
    A('v_lshrrev_b32 v2, 6, v0')
    A('v_and_b32 v3, 63, v0')
    A('v_readfirstlane_b32 s21, v2')
    A('s_waitcnt lgkmcnt(0)')
    stamp(A, opt, 1)
    A.srd(24, 12, 260 * 256)
    A('s_mov_b32 s18, 0')
    A(f's_cmp_lt_u32 s3, {NGEMM}'); A('s_cbranch_scc1 k1_g0')
    A('s_mov_b32 s18, 32768')
    A(f's_cmp_eq_u32 s3, {NGEMM}'); A('s_cbranch_scc1 k1_g0')
    A.srd(24, 14, 256 * 256)
    A(f's_sub_u32 s18, s3, {NGEMM+1}'); A('s_lshl_b32 s18, s18, 15')
    A('k1_g0:')
    A('s_add_u32 s19, s18, 16384')
    A('buffer_load_dwordx4 v[4:7], v1, s[24:27], s18 offen')
    A('buffer_load_dwordx4 v[8:11], v1, s[24:27], s19 offen')
    A.srd(28, 4, N * 256)
    A('v_and_b32 v12, 15, v3')
    A('v_lshrrev_b32 v13, 4, v3')
    A('v_lshlrev_b32 v14, 8, v12')
    A('v_lshl_add_u32 v14, v13, 4, v14')
    A('s_lshr_b32 s22, s21, 1')
    A('s_lshl_b32 s22, s22, 12')
    A('s_lshl_b32 s23, s3, 15')
    A('s_add_u32 s22, s22, s23')
    A(f's_cmp_ge_u32 s3, {NGEMM}'); A('s_cbranch_scc1 k1_g1')
    for s in range(4):
        A(f'buffer_load_dwordx4 v[{16+4*s}:{19+4*s}], v14, s[28:31], s22 offen offset:{64*s}')
    A('k1_g1:')
    A('v_and_b32 v32, 0x30, v0')
    A('v_lshlrev_b32 v32, 2, v32')
    A('v_xor_b32 v32, v32, v1')
    A('v_lshrrev_b32 v33, 4, v0')
    A('v_and_b32 v33, 8, v33')
    A('v_xor_b32 v32, v32, v33')
    A('v_xor_b32 v33, 8, v32')
    A('v_bfe_u32 v34, v3, 2, 2')
    A('v_and_b32 v35, 3, v3')
    A('v_lshlrev_b32 v36, 3, v13')
    A('v_add_u32 v36, v36, v34')
    A('v_lshlrev_b32 v36, 8, v36')
    A('v_lshl_or_b32 v36, v35, 4, v36')
    A('v_lshlrev_b32 v34, 6, v34')
    A('v_xor_b32 v36, v36, v34')
    A('v_and_b32 v34, 1, v13')
    A('v_lshlrev_b32 v34, 3, v34')
    A('v_xor_b32 v36, v36, v34')
    A(f's_cmp_ge_u32 s3, {NGEMM}'); A('s_cbranch_scc1 k1_prep')
    A('s_and_b32 s35, s21, 1')
    A('s_lshl_b32 s36, s35, 7')
    A('v_xor_b32 v36, s36, v36')
    A('v_xor_b32 v37, 8, v36')
    A('v_xor_b32 v38, 64, v36')
    A('v_xor_b32 v39, 64, v37')
    A('s_waitcnt vmcnt(5)')
    A('ds_write_b64 v32, v[4:5]'); A('ds_write_b64 v33, v[6:7]')
    A('s_waitcnt vmcnt(4)')
    stamp(A, opt, 2)
    A('ds_write_b64 v32, v[8:9] offset:16384'); A('ds_write_b64 v33, v[10:11] offset:16384')
    A('s_waitcnt lgkmcnt(0)')
    A('s_barrier')
    stamp(A, opt, 3)
    for s in range(4):
        for t in range(4):
            r = 40 + 16 * s + 4 * t
            A(f'ds_read_b64_tr_b16 v[{r}:{r+1}], v{36+t} offset:{8192*s}')
            A(f'ds_read_b64_tr_b16 v[{r+2}:{r+3}], v{36+t} offset:{8192*s+1024}')
        if s == 1:
            pass
    for s in range(4):
        rem = 8 * (3 - s)
        A(f's_waitcnt vmcnt({3-s}) lgkmcnt({min(rem,15)})')
        for t in range(4):
            r = 40 + 16 * s + 4 * t
            c = '0' if s == 0 else f'v[{104+4*t}:{107+4*t}]'
            A(f'v_mfma_f32_16x16x32_bf16 v[{104+4*t}:{107+4*t}], v[{r}:{r+3}], v[{16+4*s}:{19+4*s}], {c}')
    stamp(A, opt, 4)
    A.srd(24, 16, PROWS * 256, off=WS_P)
    A(f's_mov_b32 s40, {NLOG2E}'); A('s_mov_b32 s41, s40')
    A('s_add_u32 s22, s22, s36')
    for t in range(8):
        A(f'v_pk_mul_f32 v[{104+2*t}:{105+2*t}], v[{104+2*t}:{105+2*t}], s[40:41]')
    for t in range(8):
        A(f'v_cvt_pk_bf16_f32 v{4+t}, v{104+2*t}, v{105+2*t}')
    A(f'buffer_store_dwordx4 v[4:7], v14, s[24:27], s22 offen {st}')
    A(f'buffer_store_dwordx4 v[8:11], v14, s[24:27], s22 offen offset:64 {st}')
    stamp(A, opt, 5)
    A('v_max3_f32 v40, |v104|, |v105|, |v106|')
    for t in range(6):
        A(f'v_max3_f32 v40, v40, |v{107+2*t}|, |v{108+2*t}|')
    A('v_max_f32 v40, v40, |v119|')
    for sh in DPPS: A(f'v_max_u32_dpp v40, v40, v40 {sh}')
    A('v_lshrrev_b32 v40, 16, v40'); A('v_add_u32 v40, 1, v40')
    A.srd(28, 16, MAXT_BYTES, off=WS_MAXT)
    A('s_lshl_b32 s23, s2, 4'); A('s_add_u32 s23, s23, s21'); A('s_lshl_b32 s23, s23, 1')
    A('s_mov_b32 exec_lo, 0'); A('s_mov_b32 exec_hi, 0x80000000')
    A('buffer_store_short v40, off, s[28:31], s23')
    stamp_end(A, opt, 6, 16, WS_STAMP)
    A('s_endpgm')
    A('k1_prep:')
    A('s_lshr_b32 s35, s21, 1')
    A('s_lshr_b32 s36, s35, 1'); A('s_lshl_b32 s36, s36, 6')
    A('s_and_b32 s37, s35, 1'); A('s_lshl_b32 s37, s37, 3'); A('s_or_b32 s36, s36, s37')
    A('v_xor_b32 v36, s36, v36')
    A('s_and_b32 s37, s21, 1'); A('s_lshl_b32 s37, s37, 14')
    A('v_add_u32 v36, s37, v36')
    A('s_waitcnt vmcnt(1)')
    A('ds_write_b64 v32, v[4:5]'); A('ds_write_b64 v33, v[6:7]')
    A('s_waitcnt vmcnt(0)')
    A('ds_write_b64 v32, v[8:9] offset:16384'); A('ds_write_b64 v33, v[10:11] offset:16384')
    A('s_waitcnt lgkmcnt(0)')
    A('s_barrier')
    A('ds_read_b64_tr_b16 v[40:41], v36'); A('ds_read_b64_tr_b16 v[42:43], v36 offset:1024')
    A('ds_read_b64_tr_b16 v[44:45], v36 offset:8192'); A('ds_read_b64_tr_b16 v[46:47], v36 offset:9216')
    A.srd(28, 16, 3 * 32768 + 2048, off=WS_FR)
    A(f's_sub_u32 s23, s3, {NGEMM}'); A('s_lshl_b32 s23, s23, 15')
    A('s_lshl_b32 s22, s21, 11'); A('s_add_u32 s23, s23, s22')
    A('v_lshlrev_b32 v4, 4, v3')
    A('s_waitcnt lgkmcnt(0)')
    A(f'buffer_store_dwordx4 v[40:43], v4, s[28:31], s23 offen {st}')
    A(f'buffer_store_dwordx4 v[44:47], v4, s[28:31], s23 offen offset:1024 {st}')
    A(f's_cmp_lg_u32 s3, {NGEMM}'); A('s_cbranch_scc1 k1_end')
    A('s_cmp_lg_u32 s21, 0'); A('s_cbranch_scc1 k1_end')
    A('v_lshlrev_b32 v5, 4, v12'); A('v_lshl_add_u32 v5, v13, 1, v5')
    A('s_mov_b32 s18, 65536')
    for d in range(4):
        A(f'buffer_load_ushort v{16+d}, v5, s[24:27], s18 offen offset:{256*d}')
        A(f'buffer_load_ushort v{20+d}, v5, s[24:27], s18 offen offset:{256*d+8}')
    A(f's_mov_b32 s40, {NLOG2E}')
    A('s_waitcnt vmcnt(0)')
    for d in range(8):
        A(f'v_lshlrev_b32 v{16+d}, 16, v{16+d}')
        A(f'v_mul_f32 v{16+d}, s40, v{16+d}')
    for d in range(4):
        A(f'v_cvt_pk_bf16_f32 v{24+d}, v{16+2*d}, v{17+2*d}')
    A('s_mov_b32 s18, 98304')
    A(f'buffer_store_dwordx4 v[24:27], v4, s[28:31], s18 offen {st}')
    for d in range(4):
        A(f'v_max_f32 v{16+d}, |v{16+d}|, |v{20+d}|')
    for sh in ('row_shr:1', 'row_shr:2', 'row_shr:4', 'row_shr:8', 'row_bcast:15 row_mask:0xa', 'row_bcast:31 row_mask:0xc'):
        for d in range(4):
            A(f'v_max_u32_dpp v{16+d}, v{16+d}, v{16+d} {sh}')
    A('v_add_f32 v16, v16, v17'); A('v_add_f32 v18, v18, v19'); A('v_add_f32 v16, v16, v18')
    A(f'v_mul_f32 v16, {f32hex(1.01)}, v16')
    A('s_mov_b32 exec_lo, 0'); A('s_mov_b32 exec_hi, 0x80000000')
    A('s_mov_b32 s18, 99328')
    A(f'buffer_store_dword v16, off, s[28:31], s18 {st}')
    A('k1_end:')
    A('s_endpgm')
```

```python
from asmlib import *
from consts import *

Q0 = 0; QH = 12800; AG0 = 25600; AG1 = 38400; CNT = 51200
ENT = 51456; ENTB = 69632; WU2 = ENT + ENTB; XT = WU2; LDS_TOTAL = WU2 + 32768
AGB = 0
PADIDX = 0xffff; DUMMYNW = 49 << 8

VLI, VLE, QA, AA, NW = 1, 2, 3, 4, 5
WP = 6
AR = 14; RING = 32
ZN, ZB, ZC, DD, TT, QQ, UU = 64, 72, 80, 88, 96, 104, 112
REC = 96
SD = 'dst_sel:DWORD dst_unused:UNUSED_PAD'
AGO = [AG0, AG0 + 8, AG1, AG1 + 8]

def r(b, n): return f'v[{b}:{b+n-1}]'

def mfma_pair(step, z):
    e = AR + 2 + 4 * step; b = RING + 8 * step
    return [f'v_mfma_f32_16x16x32_bf16 {r(z,4)}, {r(e,4)}, {r(b,4)}, {r(QQ,4)}',
            f'v_mfma_f32_16x16x32_bf16 {r(z+4,4)}, {r(e-2,4)}, {r(b+4,4)}, {r(QQ+4,4)}']

def gather(A, step):
    A(f'buffer_load_dwordx4 {r(RING+8*step+2,4)}, {r(WP+2*step,2)}, s[12:15], 0 idxen offen')
    A('s_mov_b64 exec, s[62:63]')
    A(f'ds_read_b64 {r(AR+2+4*step,2)}, v{VLE} offset:{16*step}')
    A('s_mov_b64 exec, -1')
    A(f'ds_read_b32 v{WP+2*step}, v{VLI} offset:{4096+16*step+8}')

def pk(op, d, a, b, c=None, mod=''):
    o = []
    for j in range(4):
        f = lambda x: x if isinstance(x, str) else r(x + 2 * j, 2)
        o.append(f'{op} {f(d)}, {f(a)}, {f(b)}' + (f', {f(c)}' if c is not None else '') + (' ' + mod if mod else ''))
    return o

def agg_add(A, addr, src, exact):
    if exact:
        for j in range(8): A(f'ds_add_f32 v{addr}, v{src+j} offset:{(AG0 if j < 4 else AG1) + 4*(j&3)}')
    else:
        for j in range(4): A(f'ds_add_u64 v{addr}, {r(src+2*j,2)} offset:{AGO[j]}')

def body(A, nxt, exact):
    Z = [ZN, ZB, ZC, ZB]
    na = 8 if exact else 4
    for s in range(4):
        z = Z[s]
        if s == 0 and nxt:
            A(f'v_add_u32 v{VLI}, 0x1000, v{VLI}')
            A(f'v_add_u32 v{VLE}, 0x1000, v{VLE}')
            A(f'ds_read_b32 v{NW}, v{VLI} offset:12')
        if nxt: gather(A, s)
        ex = [f'v_exp_f32 v{TT+j}, v{z+j}' for j in range(8)]
        if s < 3:
            m = mfma_pair(s + 1, Z[s + 1])
            w = f's_waitcnt vmcnt({3 if nxt else 2 - s})'
            if s == 2: w += f' lgkmcnt({6 if nxt else na})'
            seq = ex[:2] + [w, m[0]] + ex[2:5] + [m[1]] + ex[5:]
        else:
            seq = ex
        for x in seq: A(x)
        if nxt and s == 2:
            A(f'v_mov_b32 v{AA}, v{QA}')
            A(f'v_xor_b32 v{QA}, v{NW}, v{WP+1}')
            A(f'ds_read_b128 {r(QQ,4)}, v{QA}')
            A(f'ds_read_b128 {r(QQ+4,4)}, v{QA} offset:{QH}')
        if not exact:
            if s == 0:
                for x in pk('v_pk_add_f32', DD, TT, '1.0', mod='op_sel_hi:[1,0]'): A(x)
            else:
                for x in pk('v_pk_fma_f32', z, z, DD, ZN): A(x)
                for x in pk('v_pk_fma_f32', DD, DD, TT, DD): A(x)
                for x in pk('v_pk_fma_f32', ZN, ZN, TT, z): A(x)
            if s == 3:
                for j in range(8): A(f'v_rcp_f32 v{DD+j}, v{DD+j}')
                for x in pk('v_pk_fma_f32', DD, ZN, DD, 's[44:45]'): A(x)
        else:
            for x in pk('v_pk_add_f32', TT, TT, '1.0', mod='op_sel_hi:[1,0]'): A(x)
            for j in range(8): A(f'v_rcp_f32 v{TT+j}, v{TT+j}')
            if s == 0:
                for x in pk('v_pk_mul_f32', DD, z, TT): A(x)
            else:
                for x in pk('v_pk_fma_f32', DD, z, TT, DD): A(x)
        if s == 3:
            if nxt:
                A('s_waitcnt vmcnt(3) lgkmcnt(2)')
                for x in mfma_pair(0, ZN): A(x)
            agg_add(A, AA if nxt else QA, DD, exact)

def emit_k2(A, opt):
    name = 'gather_scatter__mpnn_edge_mlp__graph_kernel'
    A.start(name)
    A(f's_cmp_ge_u32 s2, {NB}'); A('s_cbranch_scc1 k2_end')
    A('s_load_dwordx2 s[4:5], s[0:1], 0')
    A('s_load_dwordx2 s[6:7], s[0:1], 48')
    A('s_load_dwordx2 s[8:9], s[0:1], 64')
    stamp(A, opt, 0)
    A('s_and_b32 s3, s2, 7'); A('s_lshl_b32 s3, s3, 5'); A('s_lshr_b32 s10, s2, 3'); A('s_add_u32 s3, s3, s10')
    A('v_lshrrev_b32 v1, 6, v0'); A('v_readfirstlane_b32 s36, v1')
    A('s_mov_b32 s37, 0'); A('s_mov_b32 s40, 0'); A('s_mov_b32 s48, 1')
    A(f's_mov_b32 s46, {NLOG2E}'); A('s_mov_b32 s47, s46')
    A('s_mov_b32 s62, 0x22221111'); A('s_mov_b32 s63, 0x88884444')
    A('k2_round:')
    A('v_lshlrev_b32 v2, 4, v0')
    A('v_lshrrev_b32 v3, 3, v0')
    A('v_lshlrev_b32 v4, 10, v3')
    A(f's_lshl_b32 s10, s3, 2'); A(f's_add_u32 s10, s10, {WS_TAB - WS_FR}')
    A('s_cmp_eq_u32 s48, 0'); A('s_cbranch_scc1 k2_r0')
    A('v_and_b32 v5, 0xf0, v0'); A('v_xor_b32 v5, v5, v2')
    A('v_and_b32 v1, 0x3f0, v2')
    A('v_lshlrev_b32 v12, 3, v0')
    A(f's_mul_i32 s11, s3, {BS*256}')
    A(f's_movk_i32 s39, {BS*16}')
    A('v_cmp_gt_u32 s[58:59], s39, v0')
    A('s_lshl_b32 s39, s36, 10'); A(f's_add_u32 m0, s39, {XT}')
    A('s_lshr_b32 s38, s36, 3'); A('s_lshl_b32 s38, s38, 2'); A('s_and_b32 s39, s36, 3'); A('s_add_u32 s38, s38, s39')
    A('s_lshl_b32 s38, s38, 13'); A('s_add_u32 s39, s38, 4096')
    A('s_waitcnt lgkmcnt(0)')
    A.srd(20, 8, WS_TAB + NCH * 1024 - WS_FR, off=WS_FR)
    A('buffer_load_dword v6, v4, s[20:23], s10 offen')
    A('s_load_dword s42, s[20:21], 99328')
    A.srd(24, 4, N * 256)
    A('s_mov_b64 exec, s[58:59]')
    A('buffer_load_dwordx4 v5, s[24:27], s11 offen lds')
    A('s_mov_b64 exec, -1')
    for j in range(8):
        A(f'buffer_load_dwordx4 {r(32+4*j,4)}, v1, s[20:23], s{38+(j>>2)} offen offset:{1024*(j&3)}')
    A.srd(32, 8, MAXT_BYTES, off=WS_MAXT)
    A('buffer_load_dwordx2 v[12:13], v12, s[32:35], 0 offen')
    A('s_mov_b32 s10, 98304')
    A('buffer_load_dwordx4 v[8:11], v1, s[20:23], s10 offen')
    A.srd(12, 8, PROWS, off=WS_P, stride=256)
    A.srd(16, 8, NCH * CHB, off=WS_REC)
    A.srd(28, 6, N * 256)
    A('s_branch k2_r1')
    A('k2_r0:')
    A('buffer_load_dword v6, v4, s[20:23], s10 offen')
    A('k2_r1:')
    stamp(A, opt, 1)
    A('v_mov_b64 v[64:65], 0'); A(f'v_mov_b32 v66, {PADIDX}'); A(f'v_mov_b32 v67, {DUMMYNW}')
    A('v_mov_b64 v[68:69], 0'); A('v_mov_b64 v[70:71], 0')
    A(f'v_add_u32 v72, {ENT}, v2')
    for k in range(4): A(f'ds_write_b128 v72, v[64:67] offset:{16384*k}')
    A('s_cmp_lt_u32 s36, 12'); A('s_cbranch_scc1 k2_pf1')
    A(f'ds_write_b128 v72, v[64:67] offset:{65536-12288}')
    A('k2_pf1:')
    A('s_cmp_eq_u32 s48, 0'); A('s_cbranch_scc1 k2_pf2')
    A(f'ds_write_b128 v2, v[68:71] offset:{AG0}')
    A('s_cmp_gt_u32 s36, 8'); A('s_cbranch_scc1 k2_pf2')
    A(f'ds_write_b128 v2, v[68:71] offset:{AG0+16384}')
    A('k2_pf2:')
    A('s_cmp_lg_u32 s36, 9'); A('s_cbranch_scc1 k2_pf3')
    A('s_mov_b64 exec, 0xffff')
    A(f'ds_write_b128 v2, v[68:71] offset:{CNT-9*1024}')
    A('s_mov_b64 exec, -1')
    A('k2_pf3:')
    assert AG0 + 16384 + 9 * 1024 == CNT
    A('v_and_b32 v7, 7, v0')
    A('v_mul_u32_u24 v7, 12, v7')
    A('v_add_u32 v7, s37, v7')
    A(f's_mov_b32 s10, {CHB}')
    A('v_mad_u32_u24 v3, v3, s10, v7')
    A('s_cmp_eq_u32 s48, 0'); A('s_cbranch_scc1 k2_r2')
    A('s_waitcnt vmcnt(11)')
    A('s_branch k2_r3')
    A('k2_r2:')
    A('s_waitcnt vmcnt(0)')
    A('k2_r3:')
    stamp(A, opt, 2)
    A(f'v_add_u32_sdwa v3, v6, v3 {SD} src0_sel:WORD_0 src1_sel:DWORD')
    A(f'v_sub_u32_sdwa v7, v6, v7 {SD} src0_sel:WORD_1 src1_sel:DWORD')
    for k in range(4):
        A(f'v_cmp_lt_i32 vcc, {96*k}, v7')
        A(f's_mov_b64 s[{50+2*k}:{51+2*k}], vcc')
        A('s_mov_b64 exec, vcc')
        A(f'buffer_load_dwordx3 {r(REC+4*k,3)}, v3, s[16:19], 0 offen offset:{96*k}')
    A('v_cmp_lt_i32 vcc, 384, v7')
    A('s_cmp_lg_u64 vcc, 0'); A('s_cselect_b32 s41, 1, 0')
    A('s_mov_b64 exec, -1')
    A('s_cmp_eq_u32 s48, 0'); A('s_cbranch_scc1 k2_r4')
    def baddr(d, base):
        A(f'v_and_b32 v{d+1}, 15, v0'); A(f'v_bfe_u32 v{d}, v0, 4, 2')
        A(f'v_xor_b32 v{d}, v{d}, v{d+1}'); A(f'v_lshlrev_b32 v{d}, 4, v{d}')
        A(f'v_lshl_add_u32 v{d}, v{d+1}, 8, v{d}')
        A('s_bfe_u32 s10, s36, 0x10002'); A('s_lshl_b32 s10, s10, 13')
        if base: A(f's_add_u32 s10, s10, {base}')
        A(f'v_add_u32 v{d}, s10, v{d}')
        for s in range(1, 4): A(f'v_xor_b32 v{d+s}, {64*s}, v{d}')
    assert XT % 256 == 0
    baddr(14, XT)
    A('v_and_b32 v19, 15, v0'); A('v_bfe_u32 v18, v0, 4, 2')
    A('s_and_b32 s10, s36, 3'); A('s_lshl_b32 s10, s10, 2'); A('v_add_u32 v18, s10, v18')
    A('v_bfe_i32 v20, v19, 0, 3'); A('v_xor_b32 v18, v18, v20'); A('v_and_b32 v18, 15, v18')
    A('v_lshlrev_b32 v18, 4, v18'); A('v_lshl_add_u32 v18, v19, 8, v18')
    A('s_bfe_u32 s10, s36, 0x10002'); A('s_lshl_b32 s11, s10, 13'); A('v_add_u32 v18, s11, v18')
    A('s_cmp_eq_u32 s10, 0'); A('s_cselect_b32 s58, -1, 0x00010001'); A('s_mov_b32 s59, s58')
    A('s_waitcnt vmcnt(14) lgkmcnt(0)')
    A('s_barrier')
    stamp(A, opt, 3)
    for rt in range(2):
        for s in range(4):
            A(f'ds_read_b128 {r(64+16*rt+4*s,4)}, v{14+s} offset:{4096*rt}')
    for rt in range(2):
        for s in range(4):
            w = f's_waitcnt lgkmcnt({7-4*rt-s})'
            if rt == 0: w += f' vmcnt({9-s})'
            A(w)
            for t in range(2):
                a = UU + 8 * rt + 4 * t
                c = '0' if s == 0 else r(a, 4)
                A(f'v_mfma_f32_16x16x32_bf16 {r(a,4)}, {r(32+16*t+4*s,4)}, {r(64+16*rt+4*s,4)}, {c}')
    A('s_waitcnt vmcnt(5)')
    A('v_pk_max_u16 v12, v12, v13')
    A(f'v_max_u32_sdwa v12, v12, v12 {SD} src0_sel:WORD_0 src1_sel:WORD_1')
    for j in range(8): A(f'v_pk_mul_f32 {r(UU+2*j,2)}, {r(UU+2*j,2)}, s[46:47]')
    A('v_mov_b32 v13, 0')
    A('s_cmp_gt_u32 s36, 7'); A('s_cbranch_scc1 k2_noq')
    for rt in range(2):
        if rt == 1: A('s_mov_b64 exec, s[58:59]')
        for t in range(2):
            a = UU + 8 * rt + 4 * t
            A(f'ds_write_b128 v18, {r(a,4)} offset:{4096*rt + QH*t}')
            A(f'v_max3_f32 v13, v13, |v{a}|, |v{a+1}|'); A(f'v_max3_f32 v13, v13, |v{a+2}|, |v{a+3}|')
    A('s_mov_b64 exec, -1')
    A('k2_noq:')
    for sh in DPPS:
        A(f'v_max_u32_dpp v12, v12, v12 {sh}'); A(f'v_max_u32_dpp v13, v13, v13 {sh}')
    A('s_lshr_b32 s10, s36, 3'); A('s_lshl_b32 s10, s10, 2'); A('v_mov_b32 v19, s10')
    A('s_mov_b32 exec_lo, 0'); A('s_mov_b32 exec_hi, 0x80000000')
    A(f'ds_max_u32 v19, v12 offset:{CNT+240}')
    A(f'ds_max_u32 v19, v13 offset:{CNT+232}')
    A('s_mov_b64 exec, -1')
    A('v_and_b32 v12, 3, v0'); A('v_lshlrev_b32 v12, 4, v12')
    A(f'v_mov_b32 v{AR+2}, 0x3f80'); A(f'v_mov_b32 v{AR+3}, 0')
    A(f'v_mov_b64 {r(AR,2)}, 0')
    A('s_mov_b32 exec_lo, 0x00f0000f'); A('s_mov_b32 exec_hi, 0xf0000f00')
    A(f'v_lshlrev_b64 {r(AR,2)}, v12, {r(AR+2,2)}')
    A('s_mov_b64 exec, -1')
    for k in range(1, 5):
        A(f'v_mov_b64 {r(AR+4*k,2)}, {r(AR,2)}'); A(f'v_mov_b64 {r(AR+4*k-2,2)}, 0')
    A('s_waitcnt vmcnt(4)')
    for s in range(4):
        A(f'v_mov_b64 {r(RING+8*s,2)}, v[8:9]'); A(f'v_mov_b64 {r(RING+8*s+6,2)}, v[10:11]')
    A('s_branch k2_r5')
    A('k2_r4:')
    A('s_waitcnt lgkmcnt(0)')
    A('s_barrier')
    A('k2_r5:')
    A('v_and_b32 v7, 0xf0, v2')
    for s in range(1, 4): A(f'v_mov_b32 v{WP+1+2*s}, v7')
    A('s_lshl_b32 s10, s36, 8'); A(f's_add_u32 s10, s10, {ENT}')
    A(f'v_and_b32 v{VLI}, 0x30, v0'); A(f'v_lshl_add_u32 v{VLI}, v{VLI}, 2, s10')
    A('v_mov_b32 v73, v2')
    A(f'v_and_b32 v{VLE}, 0xc, v0'); A(f'v_lshl_add_u32 v{VLE}, v{VLE}, 4, s10')
    A('v_and_b32 v72, 63, v0'); A('v_lshlrev_b32 v72, 2, v72')
    A('v_lshrrev_b32 v74, 4, v0')
    A('v_bfe_i32 v75, v74, 0, 3'); A('v_lshlrev_b32 v75, 4, v75'); A('v_xor_b32 v75, v75, v7'); A('v_and_b32 v75, 0xf0, v75')
    A('v_lshl_add_u32 v75, v74, 8, v75')
    A(f'v_cmp_gt_u32 s[60:61], {BS}, v74')
    A('v_lshlrev_b32 v74, 2, v74')
    A('v_mov_b32 v76, 16')
    A('s_cmp_eq_u32 s41, 0'); A('s_cbranch_scc1 k2_noflag')
    A('s_mov_b64 exec, 1')
    A(f'ds_write_b32 v72, v76 offset:{CNT+248}')
    A('k2_noflag:')
    stamp(A, opt, 4)
    for k in range(4):
        b = REC + 4 * k
        A(f's_mov_b64 exec, s[{50+2*k}:{51+2*k}]')
        if k: A('s_cbranch_execz k2_cnt_done')
        A(f's_waitcnt vmcnt({3-k})')
        A(f'v_lshlrev_b32_sdwa v{68+k}, 2, v{b+2} {SD} src0_sel:DWORD src1_sel:BYTE_3')
        A(f'ds_add_rtn_u32 v{64+k}, v{68+k}, v76 offset:{CNT}')
        A(f'v_lshrrev_b32 v{b+3}, 16, v{b+2}')
        A(f'v_and_b32 v{b+2}, 0xffff, v{b+2}')
    A('k2_cnt_done:')
    A('s_mov_b64 exec, -1')
    A('s_waitcnt lgkmcnt(0)')
    A('s_barrier')
    stamp(A, opt, 5)
    A(f'ds_read_b32 v77, v72 offset:{CNT}')
    A(f'ds_read_b32 v74, v74 offset:{CNT}')
    A('s_cmp_eq_u32 s48, 0'); A('s_cbranch_scc1 k2_r7')
    A('s_lshl_b32 s10, s36, 10'); A(f's_add_u32 m0, s10, {WU2}')
    A('s_mov_b32 s11, 65536')
    A('buffer_load_dwordx4 v73, s[20:23], s11 offen lds')
    A(f's_add_u32 m0, s10, {WU2+16384}')
    A('s_mov_b32 s11, 81920')
    A('buffer_load_dwordx4 v73, s[20:23], s11 offen lds')
    A('k2_r7:')
    A('s_waitcnt lgkmcnt(1)')
    A('v_add_u32 v78, 48, v77'); A('v_and_b32 v78, 0xffffffc0, v78')
    A('v_mov_b32 v79, v78')
    for sh in DPPS: A(f'v_add_u32_dpp v79, v79, v79 {sh}')
    A('v_sub_u32 v78, v79, v78')
    A(f'v_add_u32 v78, {ENT}, v78')
    A('ds_bpermute_b32 v68, v68, v78'); A('ds_bpermute_b32 v69, v69, v78')
    A('s_cmp_eq_u64 s[54:55], 0'); A('s_cbranch_scc1 k2_bp_done')
    A('ds_bpermute_b32 v70, v70, v78'); A('ds_bpermute_b32 v71, v71, v78')
    A('k2_bp_done:')
    A(f'v_readlane_b32 s38, v79, {BS-1}')
    A('v_readlane_b32 s41, v77, 62')
    A('s_add_u32 s38, s38, 255'); A('s_lshr_b32 s38, s38, 8')
    A('s_sub_u32 s38, s38, s36'); A('s_add_u32 s38, s38, 15'); A('s_lshr_b32 s38, s38, 4')
    A('s_waitcnt lgkmcnt(0)')
    for k in range(4):
        b = REC + 4 * k
        A(f's_mov_b64 exec, s[{50+2*k}:{51+2*k}]')
        if k: A('s_cbranch_execz k2_sc_done')
        A(f'v_add_u32 v{64+k}, v{64+k}, v{68+k}')
        A(f'ds_write_b128 v{64+k}, {r(b,4)}')
    A('k2_sc_done:')
    A('s_mov_b64 exec, s[60:61]')
    A(f'ds_read_b128 {r(ZC,4)}, v75'); A(f'ds_read_b128 {r(ZC+4,4)}, v75 offset:{QH}')
    A('s_mov_b64 exec, -1')
    A('s_cmp_eq_u32 s48, 0'); A('s_cbranch_scc1 k2_r8')
    A('v_readlane_b32 s10, v77, 60'); A('v_readlane_b32 s11, v77, 61'); A('v_readlane_b32 s39, v77, 58')
    A('s_lshl_b32 s10, s10, 16'); A('s_lshl_b32 s11, s11, 16')
    A('v_mov_b32 v78, s10'); A('v_mul_f32 v78, s42, v78'); A('v_add_f32 v78, s11, v78'); A('v_add_f32 v78, s39, v78')
    A('v_readfirstlane_b32 s10, v78')
    A('s_mov_b32 s40, s41')
    A(f's_cmp_gt_u32 s10, {f32hex(30.0)}'); A('s_cselect_b32 s40, 1, s40')
    A('s_lshr_b32 s10, s10, 23')
    A('s_cmp_lt_u32 s10, 32'); A('s_cselect_b32 s40, 1, s40')
    A('s_lshl_b32 s10, s10, 23')
    A(f's_add_u32 s44, s10, {(5 << 23) | 0x400000}'); A('s_mov_b32 s45, s44')
    A(f's_sub_u32 s46, s10, {18 << 23}'); A('s_mov_b32 s47, s46')
    A('s_sub_u32 s42, 0, s44'); A('s_subb_u32 s43, 0, s44')
    A('k2_r8:')
    A('s_waitcnt lgkmcnt(0)')
    A('s_barrier')
    stamp(A, opt, 6)
    A('s_cmp_eq_u32 s38, 0'); A('s_cbranch_scc1 k2_pc')
    for s in range(4): A(f'ds_read_b32 v{WP+2*s}, v{VLI} offset:{16*s+8}')
    A(f'ds_read_b32 v{NW}, v{VLI} offset:12')
    A('s_waitcnt lgkmcnt(0)')
    for s in range(4): gather(A, s)
    A(f'v_xor_b32 v{QA}, v{NW}, v{WP+1}')
    A(f'ds_read_b128 {r(QQ,4)}, v{QA}')
    A(f'ds_read_b128 {r(QQ+4,4)}, v{QA} offset:{QH}')
    A('k2_pc:')
    A('s_mov_b64 exec, s[60:61]')
    A('s_cbranch_execz k2_pc_done')
    A('v_add_u32 v78, 48, v74'); A('v_lshrrev_b32 v78, 6, v78')
    A('v_lshlrev_b32 v76, 6, v78'); A('v_sub_u32 v76, v74, v76')
    A('v_cvt_f32_i32 v76, v76'); A(f'v_mul_f32 v76, {f32hex(1/16)}, v76'); A('v_mov_b32 v77, v76')
    for j in range(8): A(f'v_exp_f32 v{TT+j}, v{ZC+j}')
    for x in pk('v_pk_mul_f32', ZC, ZC, 'v[76:77]'): A(x)
    for x in pk('v_pk_add_f32', TT, TT, '1.0', mod='op_sel_hi:[1,0]'): A(x)
    for j in range(8): A(f'v_rcp_f32 v{TT+j}, v{TT+j}')
    A('s_cmp_lg_u32 s40, 0'); A('s_cbranch_scc1 k2_pc_x')
    A('v_add_u32 v78, 1, v78')
    A('v_mad_u64_u32 v[76:77], vcc, v78, s42, 0')
    A('v_mul_lo_u32 v78, v78, s43'); A('v_add_u32 v77, v77, v78')
    for x in pk('v_pk_fma_f32', ZC, ZC, TT, 's[44:45]'): A(x)
    for j in range(4): A(f'v_lshl_add_u64 {r(ZC+2*j,2)}, {r(ZC+2*j,2)}, 0, v[76:77]')
    agg_add(A, 75, ZC, False)
    A('s_branch k2_pc_done')
    A('k2_pc_x:')
    for x in pk('v_pk_mul_f32', ZC, ZC, TT): A(x)
    agg_add(A, 75, ZC, True)
    A('k2_pc_done:')
    A('s_mov_b64 exec, -1')
    A('s_cmp_eq_u32 s38, 0'); A('s_cbranch_scc1 k2_loop_done')
    A('s_waitcnt vmcnt(3) lgkmcnt(0)')
    for x in mfma_pair(0, ZN): A(x)
    A('s_cmp_lg_u32 s40, 0'); A('s_cbranch_scc1 k2_exact')
    for ex, nm in ((False, 'f'), (True, 'x')):
        if ex: A('k2_exact:')
        A('s_cmp_eq_u32 s38, 1'); A(f's_cbranch_scc1 k2_last_{nm}')
        A(f'k2_loop_{nm}:')
        body(A, True, ex)
        A('s_sub_u32 s38, s38, 1'); A('s_cmp_gt_u32 s38, 1'); A(f's_cbranch_scc1 k2_loop_{nm}')
        A(f'k2_last_{nm}:')
        body(A, False, ex)
        if not ex: A('s_branch k2_epi')
    A('k2_loop_done:')
    A('s_cmp_eq_u32 s41, 0'); A('s_cbranch_scc1 k2_epi')
    A('s_add_u32 s37, s37, 384'); A('s_mov_b32 s48, 0')
    A('s_waitcnt lgkmcnt(0)')
    A('s_barrier')
    A('s_branch k2_round')
    A('k2_epi:')
    if opt.get('stamp'): A('s_memrealtime s[66:67]')
    A('v_lshrrev_b32 v4, 4, v0')
    A('v_bfe_i32 v5, v4, 0, 3'); A('v_lshlrev_b32 v5, 4, v5'); A('v_xor_b32 v5, v5, v7'); A('v_and_b32 v5, 0xf0, v5')
    A('v_lshl_add_u32 v5, v4, 8, v5')
    A('v_lshlrev_b32 v6, 4, v0'); A('v_and_b32 v4, 0xf0, v0'); A('v_xor_b32 v6, v6, v4')
    A('s_waitcnt vmcnt(0) lgkmcnt(0)')
    A('s_barrier')
    if opt.get('stamp'): A('s_memrealtime s[68:69]')
    A('s_mov_b64 exec, s[60:61]')
    A('s_cbranch_execz k2_p1_done')
    A(f'ds_read_b128 v[64:67], v5 offset:{AG0}'); A(f'ds_read_b128 v[68:71], v5 offset:{AG1}')
    A('s_mov_b64 exec, -1')
    A('k2_p1_done:') if False else None
    A('s_waitcnt lgkmcnt(0)')
    A('s_cmp_lg_u32 s40, 0'); A('s_cbranch_scc1 k2_p1_x')
    for j in range(8): A(f'v_cvt_f32_i32 v{64+j}, v{64+j}')
    for x in pk('v_pk_mul_f32', 64, 64, 's[46:47]'): A(x)
    A('k2_p1_x:')
    for j in range(4): A(f'v_cvt_pk_bf16_f32 v{72+j}, v{64+2*j}, v{65+2*j}')
    A(f'ds_write_b128 v6, v[72:75] offset:{AGB}')
    A('k2_p1_done:')
    A('s_mov_b64 exec, -1')
    A('s_cmp_gt_u32 s36, 7'); A('s_cbranch_scc1 k2_p2')
    A('s_waitcnt lgkmcnt(0)')
    A('s_barrier')
    A('s_branch k2_fin')
    A('k2_p2:')
    A('v_and_b32 v1, 63, v0')
    A('s_and_b32 s11, s36, 3'); A('s_lshl_b32 s10, s11, 13'); A(f's_add_u32 s10, s10, {WU2}')
    A('v_lshl_add_u32 v1, v1, 4, s10')
    for k in range(8): A(f'ds_read_b128 {r(32+4*k,4)}, v1 offset:{1024*k}')
    baddr(14, AGB)
    A('v_and_b32 v19, 15, v0'); A('v_and_b32 v18, 0x30, v0'); A('v_lshl_add_u32 v18, v19, 8, v18')
    A('s_lshl_b32 s11, s11, 6'); A('s_add_u32 s11, s11, s10'); A(f's_mul_i32 s10, s3, {BS*256}'); A('s_add_u32 s11, s11, s10')
    A('s_add_u32 s10, s11, 4096')
    A(f's_mov_b32 s46, {NLN2}'); A('s_mov_b32 s47, s46')
    A('s_waitcnt lgkmcnt(0)')
    A('s_barrier')
    for rt in range(2):
        for s in range(4):
            A(f'ds_read_b128 {r(64+16*rt+4*s,4)}, v{14+s} offset:{4096*rt}')
    for rt in range(2):
        for s in range(4):
            A(f's_waitcnt lgkmcnt({7-4*rt-s})')
            for t in range(2):
                a = UU + 8 * rt + 4 * t
                A(f'v_mfma_f32_16x16x32_bf16 {r(a,4)}, {r(32+16*t+4*s,4)}, {r(64+16*rt+4*s,4)}, {r(a,4)}')
    for rt in range(2):
        u = UU + 8 * rt; t = 96 + 8 * rt
        if rt == 1: A('s_mov_b64 exec, s[58:59]')
        for j in range(8): A(f'v_exp_f32 v{t+j}, v{u+j}')
        for x in pk('v_pk_mul_f32', u, u, 's[46:47]'): A(x)
        for x in pk('v_pk_add_f32', t, t, '1.0', mod='op_sel_hi:[1,0]'): A(x)
        for j in range(8): A(f'v_rcp_f32 v{t+j}, v{t+j}')
        for x in pk('v_pk_mul_f32', u, u, t): A(x)
        for j in range(4): A(f'v_cvt_pk_bf16_f32 v{24+4*rt+j}, v{u+2*j}, v{u+2*j+1}')
        A(f'buffer_store_dwordx4 {r(24+4*rt,4)}, v18, s[28:31], s{11-rt} offen {opt.get("k2_store_mods","")}')
    A('k2_fin:')
    stamp_end(A, opt, 7, 8, WS_STAMP2)
    A('k2_end:')
    A('s_endpgm')
    return LDS_TOTAL, 128
```

```python
import sys
from asmlib import *
from consts import *
import k1
opt = {}
for a in sys.argv[2:]:
    k, _, v = a.partition('=')
    opt[k] = v.replace('+', ' ') if v else True
hdr = open('gather_scatter__mpnn_edge_mlp__graph.s.ref').read().split('; Override launch')[0]
top = [hdr.rstrip()]
top.append(f'; @launch kernel=k1_kernel grid=({K1_WGS},1,1) block=(1024,1,1) lds={K1_LDS}')
kds = [kdesc('k1_kernel', 128)]
A = Asm()
k1.emit_k1(A, opt)
if not opt.get('k1only'):
    import k2
    lds, vg = k2.emit_k2(A, opt)
    top.append(f'; @launch kernel=gather_scatter__mpnn_edge_mlp__graph_kernel grid=({NB},1,1) block=(1024,1,1) lds={lds}')
    kds.append(kdesc('gather_scatter__mpnn_edge_mlp__graph_kernel', vg))
else:
    A.start('gather_scatter__mpnn_edge_mlp__graph_kernel'); A('s_endpgm')
    top.append(f'; @launch kernel=gather_scatter__mpnn_edge_mlp__graph_kernel grid=(1,1,1) block=(64,1,1) lds=0')
    kds.append(kdesc('gather_scatter__mpnn_edge_mlp__graph_kernel', 8))
A('code_end:')
body, n = pad_hazards(A.o)
sys.stderr.write(f'nop states inserted: {n}, lines {len(body)}\n')
out = top + ['.amdgcn_target "amdgcn-amd-amdhsa--gfx950"', '.text'] + body + ['.section .rodata,"a"'] + kds
open(sys.argv[1], 'w').write('\n'.join(out) + '\n')
```

```python
import re

TRANS = ('v_exp_', 'v_log_', 'v_rcp_', 'v_rsq_', 'v_sqrt_', 'v_sin_', 'v_cos_')

def _regs(tok):
    tok = tok.strip()
    tok = re.sub(r'^-|^\||\|$', '', tok)
    tok = tok.strip('|')
    m = re.match(r'^(abs|neg)\((.*)\)$', tok)
    if m: tok = m.group(2)
    m = re.match(r'^([vsa])(\d+)$', tok)
    if m: return {(m.group(1), int(m.group(2)))}
    m = re.match(r'^([vsa])\[(\d+):(\d+)\]$', tok)
    if m: return {(m.group(1), i) for i in range(int(m.group(2)), int(m.group(3)) + 1)}
    if tok == 'vcc': return {('s', 106), ('s', 107)}
    if tok == 'vcc_lo': return {('s', 106)}
    if tok == 'vcc_hi': return {('s', 107)}
    if tok == 'exec': return {('s', 126), ('s', 127)}
    if tok == 'exec_lo': return {('s', 126)}
    if tok == 'exec_hi': return {('s', 127)}
    if tok == 'm0': return {('s', 124)}
    return set()

VCC = {('s', 106), ('s', 107)}
EXEC = {('s', 126), ('s', 127)}

class Ins:
    def __init__(self, text):
        self.text = text
        t = text.split(';')[0].strip()
        self.label = None
        self.op = None
        if t.endswith(':'):
            self.label = t[:-1]; return
        if not t or t.startswith('.'):
            return
        parts = t.split(None, 1)
        self.op = op = parts[0]
        rest = parts[1] if len(parts) > 1 else ''
        ops = []; cur = ''; depth = 0
        for ch in rest:
            if ch == '[': depth += 1
            if ch == ']': depth -= 1
            if ch == ',' and depth == 0: ops.append(cur); cur = ''
            else: cur += ch
        if cur.strip(): ops.append(cur)
        mods = ''
        if ops:
            last = ops[-1].strip().split(None, 1)
            ops[-1] = last[0]
            if len(last) > 1: mods = last[1]
        self.ops = [o.strip() for o in ops]; self.mods = mods
        self.valu = op.startswith('v_') and not op.startswith('v_mfma')
        self.mfma = op.startswith('v_mfma')
        self.vmem = op.startswith(('buffer_', 'global_', 'flat_'))
        self.ds = op.startswith('ds_')
        self.salu = op.startswith('s_')
        self.trans = op.startswith(TRANS)
        self.dpp = ('dpp' in op) or any(k in mods for k in ('row_shr', 'row_shl', 'row_bcast', 'quad_perm', 'row_ror', 'wave_', 'row_mirror', 'row_half_mirror', 'row_newbcast'))
        self.sdwa = 'sdwa' in op or 'dst_sel' in mods
        R = [_regs(o) for o in self.ops]
        self.dst = set(); self.src = set(); self.srcC = set(); self.sdata = set()
        if self.valu or self.mfma:
            if op.startswith('v_cmpx'):
                self.dst = R[0] | EXEC; self.src = set().union(*R[1:])
            elif op.startswith(('v_permlane16_swap', 'v_permlane32_swap', 'v_swap')):
                self.dst = R[0] | R[1]; self.src = R[0] | R[1]
            elif re.match(r'v_(add|sub|subrev|addc|subb|subbrev)_co', op) or op.startswith(('v_div_scale', 'v_mad_u64_u32', 'v_mad_i64_i32')):
                self.dst = R[0] | R[1]; self.src = set().union(*R[2:])
            else:
                self.dst = R[0]; self.src = set().union(*R[1:]) if len(R) > 1 else set()
                if op.startswith(('v_fmac', 'v_mac', 'v_pk_fmac', 'v_dot2c', 'v_writelane')) or self.dpp or self.sdwa: self.src |= R[0]
                if op.startswith('v_cndmask') and len(R) == 3: self.src |= VCC
            if self.mfma: self.srcC = R[3]
        elif self.vmem:
            if 'load' in op and 'lds' not in mods.split():
                self.dst = R[0]; self.src = set().union(*R[1:])
            elif 'atomic' in op and 'sc0' in mods.split():
                self.dst = R[0]; self.src = set().union(*R)
            else:
                self.src = set().union(*R)
                if re.search(r'store_dwordx[34]', op):
                    self.sdata = R[0] if op.startswith('buffer_') else R[1]
        elif self.ds:
            if op.startswith(('ds_read', 'ds_bpermute', 'ds_permute', 'ds_swizzle')) or '_rtn' in op:
                self.dst = R[0]; self.src = set().union(*R[1:])
            else:
                self.src = set().union(*R)
        elif self.salu:
            if op.startswith(('s_cmp', 's_cbranch', 's_branch', 's_waitcnt', 's_nop', 's_barrier', 's_endpgm', 's_setprio', 's_sleep', 's_bitcmp')):
                self.src = set().union(*R) if R else set()
            else:
                self.dst = R[0] if R else set(); self.src = set().union(*R[1:]) if len(R) > 1 else set()
                if 'saveexec' in op: self.dst |= EXEC
        self.passes = 0
        if self.mfma:
            self.passes = 8 if '32x32x16' in op or '16x16x4_f32' in op else 4
    def states(self):
        if self.op is None: return 0
        if self.op == 's_nop': return int(self.ops[0]) + 1
        return 1

def vonly(s): return {r for r in s if r[0] in 'va'}
def sonly(s): return {r for r in s if r[0] == 's'}

def required(p, c):
    n = 0
    if p.valu:
        if c.mfma and vonly(p.dst) & c.src: n = max(n, 2)
        if c.mfma and p.dst & EXEC: n = max(n, 4)
        if p.trans and c.valu and not c.trans and vonly(p.dst) & c.src: n = max(n, 1)
        if p.trans and (c.ds or c.vmem) and vonly(p.dst) & c.src: n = max(n, 1)
        if c.vmem and sonly(p.dst) & c.src: n = max(n, 5)
        if c.valu and (sonly(p.dst) - EXEC) & c.src:
            n = max(n, 4 if c.op.startswith(('v_readlane', 'v_writelane')) else 2)
        if c.valu and (p.dst & EXEC) and (c.src & EXEC): n = max(n, 2)
        if c.op.startswith(('v_readlane', 'v_readfirstlane', 'v_writelane', 'v_permlane')) and p.dst & EXEC: n = max(n, 4)
        if c.op.startswith(('v_readlane', 'v_readfirstlane')) and vonly(p.dst) & c.src: n = max(n, 1)
        if c.valu and c.dpp and vonly(p.dst) & c.src: n = max(n, 2)
        if c.valu and c.dpp and p.dst & EXEC: n = max(n, 5)
        if c.op.startswith('v_permlane') and vonly(p.dst) & c.src: n = max(n, 2)
        if (p.sdwa or 'op_sel' in p.mods and not p.op.startswith('v_pk')) and c.valu and vonly(p.dst) & (c.src | c.dst): n = max(n, 1)
    if p.mfma:
        big = {4: 8, 8: 12}[p.passes]
        if (c.valu or c.vmem or c.ds) and p.dst & (c.src | c.dst): n = max(n, big)
        if c.mfma:
            ab = c.src - c.srcC
            if p.dst & ab: n = max(n, big)
            if p.dst & c.srcC and not (p.dst == c.srcC and p.passes == c.passes): n = max(n, big - 2)
        if c.valu and p.srcC & c.dst: n = max(n, {4: 3, 8: 7}[p.passes])
    if p.vmem and p.sdata:
        if c.valu and p.sdata & c.dst: n = max(n, 2)
        elif (c.vmem or c.ds or c.mfma) and p.sdata & c.dst: n = max(n, 1)
    if p.salu and ('s', 124) in p.dst and ((c.vmem and 'lds' in c.mods.split()) or (c.ds and 'addtid' in c.op)): n = max(n, 1)
    return n

MAXW = 12
def pad_hazards(lines):
    ins = [Ins(l) for l in lines]
    changed = True; total = 0
    while changed:
        changed = False
        lab = {x.label: i for i, x in enumerate(ins) if x.label}
        br = {}
        for i, x in enumerate(ins):
            if x.op and (x.op.startswith('s_cbranch') or x.op == 's_branch'):
                br.setdefault(lab[x.ops[0]], []).append(i)
        def preds(i):
            out = []
            if i > 0:
                p = ins[i - 1]
                if not (p.op in ('s_branch', 's_endpgm')): out.append(i - 1)
            out += br.get(i, [])
            return out
        for i, c in enumerate(ins):
            if c.op is None or c.salu: continue
            need = 0
            stack = [(j, 0) for j in preds(i)]
            seen = {}
            while stack:
                j, d = stack.pop()
                if seen.get(j, 99) <= d: continue
                seen[j] = d
                p = ins[j]
                if p.op is not None:
                    r = required(p, c)
                    if r > d: need = max(need, r - d)
                nd = d + p.states()
                if nd < MAXW:
                    stack += [(k, nd) for k in preds(j)]
            if need:
                ins.insert(i, Ins(f's_nop {need - 1}'))
                total += need
                changed = True
                break
    return [x.text for x in ins], total

class Asm:
    def __init__(self):
        self.o = []
    def __call__(self, s):
        for l in s.split('\n'):
            l = l.strip()
            if l: self.o.append(l)
    def srd(self, d, b, n, off=0, w3='0x00020000', stride=0):
        if off:
            self(f's_add_u32 s{d}, s{b}, {off}'); self(f's_addc_u32 s{d+1}, s{b+1}, 0')
        else:
            self(f's_mov_b32 s{d}, s{b}'); self(f's_mov_b32 s{d+1}, s{b+1}')
        if stride: self(f's_or_b32 s{d+1}, s{d+1}, {stride << 16}')
        self(f's_mov_b32 s{d+2}, {n}'); self(f's_mov_b32 s{d+3}, {w3}')
    def start(self, name):
        self(f'.globl {name}'); self('.p2align 8'); self(f'.type {name},@function'); self(f'{name}:')

def kdesc(name, vgpr, extra=''):
    acc = (vgpr + 3) // 4 * 4
    return f""".p2align 6
.amdhsa_kernel {name}
  .amdhsa_next_free_vgpr {vgpr}
  .amdhsa_next_free_sgpr 102
  .amdhsa_accum_offset {acc}
  .amdhsa_group_segment_fixed_size 0
  .amdhsa_kernarg_size 72
  .amdhsa_user_sgpr_count 2
  .amdhsa_user_sgpr_kernarg_segment_ptr 1
  .amdhsa_system_sgpr_workgroup_id_x 1
{extra}.end_amdhsa_kernel"""


def stamp(A, opt, i):
    if opt.get('stamp'):
        A(f's_memrealtime s[{64+2*i}:{65+2*i}]')

def stamp_end(A, opt, i, wsreg, off):
    if not opt.get('stamp'): return
    A('s_waitcnt vmcnt(0)')
    A(f's_memrealtime s[{64+2*i}:{65+2*i}]')
    A.srd(96, wsreg, 1 << 18, off=off)
    A('s_mov_b64 exec, -1')
    A('v_lshrrev_b32 v120, 6, v0')
    A('v_readfirstlane_b32 s100, v120')
    A('s_lshl_b32 s101, s2, 4'); A('s_add_u32 s100, s100, s101'); A('s_lshl_b32 s100, s100, 6')
    A('s_waitcnt lgkmcnt(0)')
    for k in range(16): A(f'v_mov_b32 v{112+k}, s{64+2*k}')
    A('s_mov_b64 exec, 1')
    for k in range(4): A(f'buffer_store_dwordx4 v[{112+4*k}:{115+4*k}], off, s[96:99], s100 offset:{16*k}')

import struct
def f32hex(x): return '0x%08x' % struct.unpack('<I', struct.pack('<f', x))[0]
```

```python
from asmlib import *
from consts import *

def emit_k1(A, opt):
    st = opt.get('k1_store_mods', '')
    A.start('k1_kernel')
    A(f's_cmp_ge_u32 s2, {K1_WGS}'); A('s_cbranch_scc1 k1_end')
    A('s_load_dwordx4 s[4:7], s[0:1], 0')
    A('s_load_dwordx4 s[8:11], s[0:1], 16')
    A('s_load_dwordx4 s[12:15], s[0:1], 32')
    A('s_load_dwordx2 s[16:17], s[0:1], 64')
    stamp(A, opt, 0)
    A(f's_cmp_ge_u32 s2, {NCH}'); A('s_cbranch_scc1 k1_gemm')
    A('v_lshlrev_b32 v1, 2, v0')
    A('v_mov_b32 v2, 0')
    A('ds_write_b32 v1, v2')
    A(f's_mul_i32 s3, s2, {CH}')
    A(f's_sub_u32 s18, {E}, s3'); A(f's_min_u32 s18, s18, {CH}')
    A('v_lshlrev_b32 v2, 4, v0')
    A('v_lshlrev_b32 v3, 5, v0')
    A('v_and_b32 v52, 63, v0')
    A('v_lshlrev_b32 v52, 4, v52')
    A('s_lshl_b32 s19, s3, 2'); A('s_lshl_b32 s20, s3, 3')
    for i in range(4): A(f'v_mov_b64 v[{12+2*i}:{13+2*i}], 0')
    A(f's_mul_i32 s43, s2, {CHB}')
    A('s_waitcnt lgkmcnt(0)')
    stamp(A, opt, 1)
    A.srd(24, 10, E * 4); A.srd(28, 8, E * 4); A.srd(32, 6, E * 8)
    A.srd(36, 16, NCH * CHB, off=WS_REC)
    A('v_cmp_gt_u32 vcc, s18, v1')
    A('s_and_saveexec_b64 s[22:23], vcc')
    A('s_cbranch_execz k1_bin_idle')
    A('buffer_load_dwordx4 v[4:7], v2, s[24:27], s19 offen')
    A(f's_mov_b32 s40, {MAGIC}'); A(f's_mov_b32 s41, -{BS}')
    A('v_mov_b32 v31, 12')
    A('s_mov_b64 s[22:23], exec')
    if opt.get('k1ord'): A('s_barrier')
    A('buffer_load_dwordx4 v[8:11], v2, s[28:31], s19 offen')
    A('buffer_load_dwordx4 v[12:15], v3, s[32:35], s20 offen')
    A('buffer_load_dwordx4 v[16:19], v3, s[32:35], s20 offen offset:16')
    if not opt.get('k1ord'): A('s_barrier')
    A('s_waitcnt vmcnt(3)')
    stamp(A, opt, 2)
    for i in range(4):
        A(f'v_mul_u32_u24 v{32+i}, s40, v{4+i}')
    for i in range(4):
        A(f'v_lshrrev_b32 v{32+i}, 20, v{32+i}')
    for i in range(4):
        A(f'v_lshlrev_b32 v{36+i}, 2, v{32+i}')
        A(f'ds_add_rtn_u32 v{40+i}, v{36+i}, v31')
    for i in range(4):
        A(f'v_mad_i32_i24 v{4+i}, v{32+i}, s41, v{4+i}')
        A(f'v_bfe_i32 v{32+i}, v{4+i}, 0, 3')
        A(f'v_and_b32 v{32+i}, 15, v{32+i}')
        A(f'v_lshl_or_b32 v{4+i}, v{4+i}, 4, v{32+i}')
    A('s_waitcnt lgkmcnt(0)')
    A('s_barrier')
    stamp(A, opt, 3)
    A('s_mov_b64 exec, -1')
    def scan():
        A('ds_read_b128 v[44:47], v52')
        A('s_waitcnt lgkmcnt(0)')
        A('v_add_u32 v49, v44, v45')
        A('v_add_u32 v50, v49, v46')
        A('v_add_u32 v51, v50, v47')
        A('v_mov_b32 v48, v51')
        for sh in ('row_shr:1', 'row_shr:2', 'row_shr:4', 'row_shr:8', 'row_bcast:15 row_mask:0xa', 'row_bcast:31 row_mask:0xc'):
            A(f'v_add_u32_dpp v48, v48, v48 {sh}')
        A('v_sub_u32 v48, v48, v51')
        A('v_add_u32 v51, v48, v50')
        A('v_add_u32 v50, v48, v49')
        A('v_add_u32 v49, v48, v44')
    scan()
    A('ds_write_b128 v52, v[48:51] offset:1024')
    A('s_mov_b64 exec, s[22:23]')
    for i in range(4):
        A(f'ds_read_b32 v{36+i}, v{36+i} offset:1024')
    A('s_waitcnt vmcnt(2)')
    for i in range(4):
        A(f'v_lshl_or_b32 v{4+i}, v{4+i}, 20, v{8+i}')
    A('s_waitcnt lgkmcnt(0)')
    for i in range(4):
        A(f'v_add_u32 v{40+i}, v{40+i}, v{36+i}')
        A(f'ds_write_b32 v{40+i}, v{4+i} offset:2056')
    A('s_waitcnt vmcnt(0)')
    for i in range(4):
        A(f'v_add_u32 v{40+i}, 0x800, v{40+i}')
        A(f'ds_write2_b32 v{40+i}, v{12+2*i}, v{13+2*i} offset1:1')
    A('s_mov_b64 exec, -1')
    A('s_waitcnt lgkmcnt(0)')
    stamp(A, opt, 4)
    A('s_branch k1_bin_join')
    A('k1_bin_idle:')
    A('s_mov_b64 exec, -1')
    A('s_barrier')
    A('s_barrier')
    A('v_cmp_lt_u32 vcc, 959, v0')
    A('s_cbranch_vccz k1_bin_join')
    scan()
    A.srd(24, 16, NCH * 1024, off=WS_TAB)
    A('s_lshl_b32 s19, s2, 10')
    for i in range(4):
        A(f'v_lshl_or_b32 v{48+i}, v{44+i}, 16, v{48+i}')
    A(f'buffer_store_dwordx4 v[48:51], v52, s[24:27], s19 offen {st}')
    A('k1_bin_join:')
    A('s_barrier')
    stamp(A, opt, 5)
    A('ds_read_b128 v[4:7], v2 offset:2048')
    A('ds_read_b128 v[8:11], v2 offset:18432')
    A('s_add_u32 s44, s43, 16384'); A('s_add_u32 s45, s43, 32768')
    A(f'v_cmp_gt_u32 vcc, {(CH*12-32768)//16}, v0')
    A('s_cbranch_vccz k1_bin_two')
    A('s_mov_b64 exec, vcc')
    A('ds_read_b128 v[20:23], v2 offset:34816')
    A('s_waitcnt lgkmcnt(0)')
    A(f'buffer_store_dwordx4 v[20:23], v2, s[36:39], s45 offen {st}')
    A('s_mov_b64 exec, -1')
    A('k1_bin_two:')
    A('s_waitcnt lgkmcnt(1)')
    A(f'buffer_store_dwordx4 v[4:7], v2, s[36:39], s43 offen {st}')
    A('s_waitcnt lgkmcnt(0)')
    A(f'buffer_store_dwordx4 v[8:11], v2, s[36:39], s44 offen {st}')
    A('s_mov_b32 s40, 0x7fff7fff')
    for i in range(8): A(f'v_and_b32 v{12+i}, s40, v{12+i}')
    for i in range(4): A(f'v_pk_max_u16 v{12+i}, v{12+i}, v{16+i}')
    A('v_pk_max_u16 v12, v12, v13'); A('v_pk_max_u16 v14, v14, v15'); A('v_pk_max_u16 v12, v12, v14')
    A('v_max_u32_sdwa v12, v12, v12 dst_sel:DWORD dst_unused:UNUSED_PAD src0_sel:WORD_0 src1_sel:WORD_1')
    for sh in DPPS: A(f'v_max_u32_dpp v12, v12, v12 {sh}')
    A.srd(28, 16, MAXT_BYTES, off=WS_MAXT)
    A('v_lshrrev_b32 v13, 5, v0'); A('v_and_b32 v13, 30, v13')
    A('s_lshl_b32 s23, s2, 5')
    A('s_mov_b32 exec_lo, 0'); A('s_mov_b32 exec_hi, 0x80000000')
    A('buffer_store_short v12, v13, s[28:31], s23 offen')
    stamp_end(A, opt, 6, 16, WS_STAMP)
    A('s_endpgm')
    A('k1_gemm:')
    A(f's_sub_u32 s3, s2, {NCH}')
    A('v_lshlrev_b32 v1, 4, v0')
    A('v_lshrrev_b32 v2, 6, v0')
    A('v_and_b32 v3, 63, v0')
    A('v_readfirstlane_b32 s21, v2')
    A('s_waitcnt lgkmcnt(0)')
    stamp(A, opt, 1)
    A.srd(24, 12, 260 * 256)
    A('s_mov_b32 s18, 0')
    A(f's_cmp_lt_u32 s3, {NGEMM}'); A('s_cbranch_scc1 k1_g0')
    A('s_mov_b32 s18, 32768')
    A(f's_cmp_eq_u32 s3, {NGEMM}'); A('s_cbranch_scc1 k1_g0')
    A.srd(24, 14, 256 * 256)
    A(f's_sub_u32 s18, s3, {NGEMM+1}'); A('s_lshl_b32 s18, s18, 15')
    A('k1_g0:')
    A('s_add_u32 s19, s18, 16384')
    A('buffer_load_dwordx4 v[4:7], v1, s[24:27], s18 offen')
    A('buffer_load_dwordx4 v[8:11], v1, s[24:27], s19 offen')
    A.srd(28, 4, N * 256)
    A('v_and_b32 v12, 15, v3')
    A('v_lshrrev_b32 v13, 4, v3')
    A('v_lshlrev_b32 v14, 8, v12')
    A('v_lshl_add_u32 v14, v13, 4, v14')
    A('s_lshr_b32 s22, s21, 1')
    A('s_lshl_b32 s22, s22, 12')
    A('s_lshl_b32 s23, s3, 15')
    A('s_add_u32 s22, s22, s23')
    A(f's_cmp_ge_u32 s3, {NGEMM}'); A('s_cbranch_scc1 k1_g1')
    A('v_and_b32 v15, 0xf0, v0'); A('v_xor_b32 v15, v15, v1')
    A('s_lshl_b32 s19, s21, 10'); A('s_add_u32 m0, s19, 32768')
    A('s_add_u32 s18, s23, 16384')
    A('buffer_load_dwordx4 v15, s[28:31], s23 offen lds')
    A('s_add_u32 m0, s19, 49152')
    A('v_xor_b32 v28, v13, v12'); A('v_lshlrev_b32 v28, 4, v28'); A('v_lshl_add_u32 v28, v12, 8, v28')
    A('buffer_load_dwordx4 v15, s[28:31], s18 offen lds')
    A('s_sub_u32 s19, s22, s23'); A('s_add_u32 s19, s19, 32768'); A('v_add_u32 v28, s19, v28')
    for s in range(1, 4): A(f'v_xor_b32 v{28+s}, {64*s}, v28')
    A('k1_g1:')
    A('v_and_b32 v32, 0x30, v0')
    A('v_lshlrev_b32 v32, 2, v32')
    A('v_xor_b32 v32, v32, v1')
    A('v_lshrrev_b32 v33, 4, v0')
    A('v_and_b32 v33, 8, v33')
    A('v_xor_b32 v32, v32, v33')
    A('v_xor_b32 v33, 8, v32')
    A('v_bfe_u32 v34, v3, 2, 2')
    A('v_and_b32 v35, 3, v3')
    A('v_lshlrev_b32 v36, 3, v13')
    A('v_add_u32 v36, v36, v34')
    A('v_lshlrev_b32 v36, 8, v36')
    A('v_lshl_or_b32 v36, v35, 4, v36')
    A('v_lshlrev_b32 v34, 6, v34')
    A('v_xor_b32 v36, v36, v34')
    A('v_and_b32 v34, 1, v13')
    A('v_lshlrev_b32 v34, 3, v34')
    A('v_xor_b32 v36, v36, v34')
    A(f's_cmp_ge_u32 s3, {NGEMM}'); A('s_cbranch_scc1 k1_prep')
    A('s_and_b32 s35, s21, 1')
    A('s_lshl_b32 s36, s35, 7')
    A('v_xor_b32 v36, s36, v36')
    A('v_xor_b32 v37, 8, v36')
    A('v_xor_b32 v38, 64, v36')
    A('v_xor_b32 v39, 64, v37')
    A('s_waitcnt vmcnt(3)')
    A('ds_write_b64 v32, v[4:5]'); A('ds_write_b64 v33, v[6:7]')
    A('s_waitcnt vmcnt(2)')
    stamp(A, opt, 2)
    A('ds_write_b64 v32, v[8:9] offset:16384'); A('ds_write_b64 v33, v[10:11] offset:16384')
    A('s_waitcnt lgkmcnt(0)')
    A('s_barrier')
    stamp(A, opt, 3)
    for s in range(4):
        for t in range(4):
            r = 40 + 16 * s + 4 * t
            A(f'ds_read_b64_tr_b16 v[{r}:{r+1}], v{36+t} offset:{8192*s}')
            A(f'ds_read_b64_tr_b16 v[{r+2}:{r+3}], v{36+t} offset:{8192*s+1024}')
    A('s_waitcnt vmcnt(0)')
    A('s_barrier')
    for s in range(4): A(f'ds_read_b128 v[{16+4*s}:{19+4*s}], v{28+s}')
    for s in range(4):
        A(f's_waitcnt lgkmcnt({3-s})')
        for t in range(4):
            r = 40 + 16 * s + 4 * t
            c = '0' if s == 0 else f'v[{104+4*t}:{107+4*t}]'
            A(f'v_mfma_f32_16x16x32_bf16 v[{104+4*t}:{107+4*t}], v[{r}:{r+3}], v[{16+4*s}:{19+4*s}], {c}')
    stamp(A, opt, 4)
    A.srd(24, 16, PROWS * 256, off=WS_P)
    A(f's_mov_b32 s40, {NLOG2E}'); A('s_mov_b32 s41, s40')
    A('s_add_u32 s22, s22, s36')
    for t in range(8):
        A(f'v_pk_mul_f32 v[{104+2*t}:{105+2*t}], v[{104+2*t}:{105+2*t}], s[40:41]')
    for t in range(8):
        A(f'v_cvt_pk_bf16_f32 v{4+t}, v{104+2*t}, v{105+2*t}')
    A(f'buffer_store_dwordx4 v[4:7], v14, s[24:27], s22 offen {st}')
    A(f'buffer_store_dwordx4 v[8:11], v14, s[24:27], s22 offen offset:64 {st}')
    stamp(A, opt, 5)
    A('v_max3_f32 v40, |v104|, |v105|, |v106|')
    for t in range(6):
        A(f'v_max3_f32 v40, v40, |v{107+2*t}|, |v{108+2*t}|')
    A('v_max_f32 v40, v40, |v119|')
    for sh in DPPS: A(f'v_max_u32_dpp v40, v40, v40 {sh}')
    A('v_lshrrev_b32 v40, 16, v40'); A('v_add_u32 v40, 1, v40')
    A.srd(28, 16, MAXT_BYTES, off=WS_MAXT)
    A('s_lshl_b32 s23, s2, 4'); A('s_add_u32 s23, s23, s21'); A('s_lshl_b32 s23, s23, 1')
    A('s_mov_b32 exec_lo, 0'); A('s_mov_b32 exec_hi, 0x80000000')
    A('buffer_store_short v40, off, s[28:31], s23')
    stamp_end(A, opt, 6, 16, WS_STAMP)
    A('s_endpgm')
    A('k1_prep:')
    A('s_lshr_b32 s35, s21, 1')
    A('s_lshr_b32 s36, s35, 1'); A('s_lshl_b32 s36, s36, 6')
    A('s_and_b32 s37, s35, 1'); A('s_lshl_b32 s37, s37, 3'); A('s_or_b32 s36, s36, s37')
    A('v_xor_b32 v36, s36, v36')
    A('s_and_b32 s37, s21, 1'); A('s_lshl_b32 s37, s37, 14')
    A('v_add_u32 v36, s37, v36')
    A('s_waitcnt vmcnt(1)')
    A('ds_write_b64 v32, v[4:5]'); A('ds_write_b64 v33, v[6:7]')
    A('s_waitcnt vmcnt(0)')
    A('ds_write_b64 v32, v[8:9] offset:16384'); A('ds_write_b64 v33, v[10:11] offset:16384')
    A('s_waitcnt lgkmcnt(0)')
    A('s_barrier')
    A('ds_read_b64_tr_b16 v[40:41], v36'); A('ds_read_b64_tr_b16 v[42:43], v36 offset:1024')
    A('ds_read_b64_tr_b16 v[44:45], v36 offset:8192'); A('ds_read_b64_tr_b16 v[46:47], v36 offset:9216')
    A.srd(28, 16, 3 * 32768 + 2048, off=WS_FR)
    A(f's_sub_u32 s23, s3, {NGEMM}'); A('s_lshl_b32 s23, s23, 15')
    A('s_lshl_b32 s22, s21, 11'); A('s_add_u32 s23, s23, s22')
    A('v_lshlrev_b32 v4, 4, v3')
    A('s_waitcnt lgkmcnt(0)')
    A(f'buffer_store_dwordx4 v[40:43], v4, s[28:31], s23 offen {st}')
    A(f'buffer_store_dwordx4 v[44:47], v4, s[28:31], s23 offen offset:1024 {st}')
    A(f's_cmp_lg_u32 s3, {NGEMM}'); A('s_cbranch_scc1 k1_end')
    A('s_cmp_lg_u32 s21, 0'); A('s_cbranch_scc1 k1_end')
    A('v_lshlrev_b32 v5, 4, v12'); A('v_lshl_add_u32 v5, v13, 1, v5')
    A('s_mov_b32 s18, 65536')
    for d in range(4):
        A(f'buffer_load_ushort v{16+d}, v5, s[24:27], s18 offen offset:{256*d}')
        A(f'buffer_load_ushort v{20+d}, v5, s[24:27], s18 offen offset:{256*d+8}')
    A(f's_mov_b32 s40, {NLOG2E}')
    A('s_waitcnt vmcnt(0)')
    for d in range(8):
        A(f'v_lshlrev_b32 v{16+d}, 16, v{16+d}')
        A(f'v_mul_f32 v{16+d}, s40, v{16+d}')
    for d in range(4):
        A(f'v_cvt_pk_bf16_f32 v{24+(d^2)}, v{16+2*d}, v{17+2*d}')
    A('s_mov_b32 s18, 98304')
    A(f'buffer_store_dwordx4 v[24:27], v4, s[28:31], s18 offen {st}')
    for d in range(4):
        A(f'v_max_f32 v{16+d}, |v{16+d}|, |v{20+d}|')
    for sh in ('row_shr:1', 'row_shr:2', 'row_shr:4', 'row_shr:8', 'row_bcast:15 row_mask:0xa', 'row_bcast:31 row_mask:0xc'):
        for d in range(4):
            A(f'v_max_u32_dpp v{16+d}, v{16+d}, v{16+d} {sh}')
    A('v_add_f32 v16, v16, v17'); A('v_add_f32 v18, v18, v19'); A('v_add_f32 v16, v16, v18')
    A(f'v_mul_f32 v16, {f32hex(1.01)}, v16')
    A('s_mov_b32 exec_lo, 0'); A('s_mov_b32 exec_hi, 0x80000000')
    A('s_mov_b32 s18, 99328')
    A(f'buffer_store_dword v16, off, s[28:31], s18 {st}')
    A('k1_end:')
    A('s_endpgm')
```

```python
from asmlib import *
from consts import *

Q0 = 0; QH = 12800; AG0 = 25600; AG1 = 38400; CNT = 51200
QT = 51456; QTB = 8192
ENT = QT + QTB; CAP = 72; NSTR = CAP * 16; ENTB = 57344
WU2 = ENT + ENTB; XT = WU2; LDS_TOTAL = WU2 + 32768
AGB = 0
PADIDX = 0xffff; DUMMYKEY = 49 << 24; DUMMYADDR = ENT + BS * NSTR
assert DUMMYADDR + 64 <= ENT + ENTB and ENT % 64 == 0 and NSTR % 64 == 0 and (BS * CAP // 4 + 4) * 8 <= QTB

TPI, VLI, VLE, QA, AA, TPE = 0, 1, 2, 3, 4, 5
WP = 6
AR = 14; RING = 32
ZN, ZB, ZC, DD, TT, QQ, UU = 64, 72, 80, 88, 96, 104, 112
RECB = [96, 100, 104, 108, 34]; CADDR = [42, 43, 44, 45, 50]; LIM = [51, 52, 53, 58, 59]
RMASK = ['s[50:51]', 's[52:53]', 's[54:55]', 's[56:57]', 's[58:59]']
FM = [96, 98, 100, 32, 34]
SD = 'dst_sel:DWORD dst_unused:UNUSED_PAD'
AGO = [AG0, AG0 + 8, AG1, AG1 + 8]

def r(b, n): return f'v[{b}:{b+n-1}]'

def mfma_pair(step, z):
    e = AR + 2 + 4 * step; b = RING + 8 * step
    return [f'v_mfma_f32_16x16x32_bf16 {r(z,4)}, {r(e,4)}, {r(b,4)}, {r(QQ,4)}',
            f'v_mfma_f32_16x16x32_bf16 {r(z+4,4)}, {r(e-2,4)}, {r(b+4,4)}, {r(QQ+4,4)}']

def gather(A, step):
    A(f'buffer_load_dwordx4 {r(RING+8*step+2,4)}, {r(WP+2*step,2)}, s[12:15], 0 idxen offen')
    A('s_mov_b64 exec, s[62:63]')
    A(f'ds_read_b64 {r(AR+2+4*step,2)}, v{VLE} offset:{16*step}')
    A('s_mov_b64 exec, -1')
    A(f'ds_read_u16 v{WP+2*step}, v{VLI} offset:{16*step+8}')

def pk(op, d, a, b, c=None, mod=''):
    o = []
    for j in range(4):
        f = lambda x: x if isinstance(x, str) else r(x + 2 * j, 2)
        o.append(f'{op} {f(d)}, {f(a)}, {f(b)}' + (f', {f(c)}' if c is not None else '') + (' ' + mod if mod else ''))
    return o

def agg_add(A, addr, src, exact):
    if exact:
        for j in range(8): A(f'ds_add_f32 v{addr}, v{src+j} offset:{(AG0 if j < 4 else AG1) + 4*(j&3)}')
    else:
        for j in range(4): A(f'ds_add_u64 v{addr}, {r(src+2*j,2)} offset:{AGO[j]}')

def body(A, nxt, exact):
    Z = [ZN, ZB, ZC, ZB]
    na = 8 if exact else 4
    for s in range(4):
        z = Z[s]
        if s == 0:
            A(f's_waitcnt lgkmcnt({na})')
            if nxt:
                A(f'v_mov_b32 v{AA}, v{QA}')
                A(f'ds_read_u16 v{QA}, v{TPI} offset:{512+2}')
        if nxt: gather(A, s)
        if nxt and s == 3:
            A(f'ds_read_b32 v{VLI}, v{TPI} offset:{3*512+4}')
            A(f'ds_read_b32 v{VLE}, v{TPE} offset:{2*512+4}')
            A(f'v_add_u32 v{TPI}, 0x200, v{TPI}')
            A(f'v_add_u32 v{TPE}, 0x200, v{TPE}')
        ex = [f'v_exp_f32 v{TT+j}, v{z+j}' for j in range(8)]
        if s < 3:
            m = mfma_pair(s + 1, Z[s + 1])
            w = f's_waitcnt vmcnt({3 if nxt else 2 - s})'
            if s == 2 and nxt: w += ' lgkmcnt(6)'
            seq = ex[:2] + [w, m[0]] + ex[2:5] + [m[1]] + ex[5:]
        else:
            seq = ex
        for x in seq: A(x)
        if nxt and s == 2:
            A(f'v_xor_b32 v{QA}, v{QA}, v{WP+1}')
            A(f'ds_read_b128 {r(QQ,4)}, v{QA}')
            A(f'ds_read_b128 {r(QQ+4,4)}, v{QA} offset:{QH}')
        if not exact:
            if s == 0:
                for x in pk('v_pk_add_f32', DD, TT, '1.0', mod='op_sel_hi:[1,0]'): A(x)
            else:
                for x in pk('v_pk_fma_f32', z, z, DD, ZN): A(x)
                for x in pk('v_pk_fma_f32', DD, DD, TT, DD): A(x)
                for x in pk('v_pk_fma_f32', ZN, ZN, TT, z): A(x)
            if s == 3:
                for j in range(8): A(f'v_rcp_f32 v{DD+j}, v{DD+j}')
                for x in pk('v_pk_fma_f32', DD, ZN, DD, 's[44:45]'): A(x)
        else:
            for x in pk('v_pk_add_f32', TT, TT, '1.0', mod='op_sel_hi:[1,0]'): A(x)
            for j in range(8): A(f'v_rcp_f32 v{TT+j}, v{TT+j}')
            if s == 0:
                for x in pk('v_pk_mul_f32', DD, z, TT): A(x)
            else:
                for x in pk('v_pk_fma_f32', DD, z, TT, DD): A(x)
        if s == 3:
            if nxt:
                A('s_waitcnt vmcnt(3) lgkmcnt(4)')
                for x in mfma_pair(0, ZN): A(x)
            agg_add(A, AA if nxt else QA, DD, exact)

def tid(A, d):
    A(f'v_mbcnt_lo_u32_b32 v{d}, -1, 0'); A(f'v_mbcnt_hi_u32_b32 v{d}, -1, v{d}')
    A('s_lshl_b32 s10, s36, 6'); A(f'v_add_u32 v{d}, s10, v{d}')

def emit_k2(A, opt):
    name = 'gather_scatter__mpnn_edge_mlp__graph_kernel'
    A.start(name)
    A(f's_cmp_ge_u32 s2, {NB}'); A('s_cbranch_scc1 k2_end')
    A('s_load_dwordx2 s[8:9], s[0:1], 64')
    A('s_load_dwordx2 s[4:5], s[0:1], 0')
    A('s_load_dwordx2 s[6:7], s[0:1], 48')
    stamp(A, opt, 0)
    A('s_and_b32 s3, s2, 7'); A('s_lshl_b32 s3, s3, 5'); A('s_lshr_b32 s10, s2, 3'); A('s_add_u32 s3, s3, s10')
    A('v_lshrrev_b32 v1, 6, v0'); A('v_readfirstlane_b32 s36, v1')
    A('s_mov_b32 s37, 0'); A('s_mov_b32 s40, 0'); A('s_mov_b32 s48, 1')
    A(f's_mov_b32 s46, {NLOG2E}'); A('s_mov_b32 s47, s46')
    A('s_mov_b32 s62, 0x22221111'); A('s_mov_b32 s63, 0x88884444')
    for k in range(5): A(f's_mov_b64 {RMASK[k]}, -1')
    A('k2_round:')
    A('v_lshrrev_b32 v3, 3, v0')
    A('v_lshlrev_b32 v4, 10, v3')
    A(f's_lshl_b32 s10, s3, 2'); A(f's_add_u32 s10, s10, {WS_TAB - WS_FR}')
    A('v_lshlrev_b32 v2, 4, v0')
    A('v_mov_b64 v[64:65], 0'); A(f'v_mov_b32 v66, {PADIDX}')
    A(f'v_add_u32 v72, {ENT}, v2')
    A('s_waitcnt lgkmcnt(0)')
    A.srd(20, 8, WS_TAB + NCH * 1024 - WS_FR, off=WS_FR)
    A('buffer_load_dword v6, v4, s[20:23], s10 offen')
    stamp(A, opt, 1)
    for k in range(3): A(f'ds_write_b96 v72, v[64:66] offset:{16384*k}')
    A('s_cmp_gt_u32 s36, 7'); A('s_cbranch_scc1 k2_pf0')
    A(f'ds_write_b96 v72, v[64:66] offset:{16384*3}')
    A('s_branch k2_pf1')
    A('k2_pf0:')
    A(f'v_mov_b32 v68, {DUMMYKEY}'); A(f'v_mov_b32 v69, {DUMMYADDR}'); A('v_mov_b64 v[70:71], v[68:69]')
    A(f'ds_write_b128 v2, v[68:71] offset:{QT-8192}')
    A('k2_pf1:')
    A('s_cmp_lg_u32 s36, 9'); A('s_cbranch_scc1 k2_pf3')
    A(f'v_and_b32 v73, 63, v0'); A(f's_movk_i32 s10, {NSTR}'); A(f'v_mov_b32 v74, {ENT}')
    A('v_mad_u32_u24 v74, v73, s10, v74')
    A(f'v_cmp_gt_u32 vcc, {BS}, v73'); A('v_cndmask_b32 v74, 0, v74, vcc')
    A(f'v_writelane_b32 v74, {QT}, 63') if False else None
    A(f's_mov_b32 s10, {QT}'); A('v_writelane_b32 v74, s10, 63')
    A('v_lshlrev_b32 v73, 2, v73')
    A(f'ds_write_b32 v73, v74 offset:{CNT}')
    A('k2_pf3:')
    A('v_and_b32 v7, 7, v0')
    A('v_mul_u32_u24 v7, 12, v7')
    A('v_add_u32 v7, s37, v7')
    A(f's_mov_b32 s10, {CHB}')
    A('v_mad_u32_u24 v3, v3, s10, v7')
    A.srd(16, 8, NCH * CHB, off=WS_REC)
    A('s_cmp_eq_u32 s48, 0'); A('s_cbranch_scc1 k2_r2')
    A('v_mov_b64 v[66:67], 0')
    A(f'ds_write_b128 v2, v[64:67] offset:{AG0}')
    A('s_cmp_gt_u32 s36, 8'); A('s_cbranch_scc1 k2_pf2')
    A(f'ds_write_b128 v2, v[64:67] offset:{AG0+16384}')
    A('k2_pf2:')
    assert AG0 + 16384 + 9 * 1024 == CNT
    A('v_and_b32 v5, 0xf0, v0'); A('v_xor_b32 v5, v5, v2')
    A('v_and_b32 v1, 0x3f0, v2')
    A('v_lshlrev_b32 v56, 3, v0')
    A(f's_mul_i32 s11, s3, {BS*256}')
    A(f's_movk_i32 s39, {BS*16}')
    A('v_cmp_gt_u32 s[60:61], s39, v0')
    A('s_lshl_b32 s39, s36, 10'); A(f's_add_u32 m0, s39, {XT}')
    A('s_lshr_b32 s38, s36, 3'); A('s_lshl_b32 s38, s38, 2'); A('s_and_b32 s39, s36, 3'); A('s_add_u32 s38, s38, s39')
    A('s_lshl_b32 s38, s38, 13'); A('s_add_u32 s39, s38, 4096')
    A('s_load_dword s42, s[20:21], 99328')
    A.srd(24, 4, N * 256)
    A.srd(32, 8, MAXT_BYTES, off=WS_MAXT)
    A.srd(12, 8, PROWS, off=WS_P, stride=256)
    A.srd(28, 6, N * 256)
    A('k2_r2:')
    A('s_waitcnt vmcnt(0)')
    stamp(A, opt, 2)
    A(f'v_add_u32_sdwa v3, v6, v3 {SD} src0_sel:WORD_0 src1_sel:DWORD')
    A(f'v_sub_u32_sdwa v7, v6, v7 {SD} src0_sel:WORD_1 src1_sel:DWORD')
    for k in range(5):
        A(f'v_cmp_lt_i32 vcc, {96*k}, v7')
        A(f's_and_b64 {RMASK[k]}, {RMASK[k]}, vcc')
    for k in range(5):
        A(f's_mov_b64 exec, {RMASK[k]}')
        A(f'buffer_load_dwordx3 {r(RECB[k],3)}, v3, s[16:19], 0 offen offset:{96*k}')
    A('s_mov_b64 exec, -1')
    A('v_cmp_lt_i32 vcc, 480, v7')
    A('s_cmp_lg_u64 vcc, 0'); A('s_cselect_b32 s41, 1, 0')
    A('s_cmp_eq_u32 s48, 0'); A('s_cbranch_scc1 k2_r4')
    A('s_mov_b64 exec, s[60:61]')
    A('buffer_load_dwordx4 v5, s[24:27], s11 offen lds')
    A('s_mov_b64 exec, -1')
    for j in range(8):
        A(f'buffer_load_dwordx4 {r(64+4*j,4)}, v1, s[20:23], s{38+(j>>2)} offen offset:{1024*(j&3)}')
    A('buffer_load_dwordx2 v[56:57], v56, s[32:35], 0 offen')
    A('s_mov_b32 s10, 98304')
    A('buffer_load_dwordx4 v[38:41], v1, s[20:23], s10 offen')
    def baddr(d, base):
        A(f'v_and_b32 v{d+1}, 15, v0'); A(f'v_bfe_u32 v{d}, v0, 4, 2')
        A(f'v_xor_b32 v{d}, v{d}, v{d+1}'); A(f'v_lshlrev_b32 v{d}, 4, v{d}')
        A(f'v_lshl_add_u32 v{d}, v{d+1}, 8, v{d}')
        A('s_bfe_u32 s10, s36, 0x10002'); A('s_lshl_b32 s10, s10, 13')
        if base: A(f's_add_u32 s10, s10, {base}')
        A(f'v_add_u32 v{d}, s10, v{d}')
        for s in range(1, 4): A(f'v_xor_b32 v{d+s}, {64*s}, v{d}')
    assert XT % 256 == 0
    baddr(46, XT)
    A('v_and_b32 v62, 15, v0'); A('v_bfe_u32 v54, v0, 4, 2')
    A('s_and_b32 s10, s36, 3'); A('s_lshl_b32 s10, s10, 2'); A('v_add_u32 v54, s10, v54')
    A('v_bfe_i32 v63, v62, 0, 3'); A('v_xor_b32 v54, v54, v63'); A('v_and_b32 v54, 15, v54')
    A('v_lshlrev_b32 v54, 4, v54'); A('v_lshl_add_u32 v54, v62, 8, v54')
    A('s_bfe_u32 s10, s36, 0x10002'); A('s_lshl_b32 s11, s10, 13'); A('v_add_u32 v54, s11, v54')
    A('s_cmp_eq_u32 s10, 0'); A('s_cselect_b32 s49, -1, 0x00010001')
    A('v_and_b32 v62, 3, v0'); A('v_lshlrev_b32 v62, 4, v62')
    A(f'v_mov_b32 v{AR+2}, 0x3f80'); A(f'v_mov_b32 v{AR+3}, 0')
    A(f'v_mov_b64 {r(AR,2)}, 0')
    A('s_mov_b32 exec_lo, 0x00f0000f'); A('s_mov_b32 exec_hi, 0xf0000f00')
    A(f'v_lshlrev_b64 {r(AR,2)}, v62, {r(AR+2,2)}')
    A('s_mov_b64 exec, -1')
    for k in range(1, 5):
        A(f'v_mov_b64 {r(AR+4*k,2)}, {r(AR,2)}'); A(f'v_mov_b64 {r(AR+4*k-2,2)}, 0')
    A('v_mov_b32 v33, v2')
    A('s_branch k2_r5')
    A('k2_r4:')
    A('s_waitcnt vmcnt(0)')
    A('k2_r5:')
    A('v_and_b32 v7, 0xf0, v2')
    for s in range(1, 4): A(f'v_mov_b32 v{WP+1+2*s}, v7')
    A('s_lshl_b32 s10, s36, 5'); A(f's_add_u32 s10, s10, {QT}')
    A(f'v_and_b32 v{TPE}, 0xc, v0'); A(f'v_lshl_add_u32 v{TPE}, v{TPE}, 1, s10')
    A(f'v_bfe_u32 v{TPI}, v0, 4, 2'); A(f'v_lshl_add_u32 v{TPI}, v{TPI}, 3, s10')
    A('v_mov_b32 v60, 16'); A(f'v_mov_b32 v61, {ENT+NSTR}'); A(f's_movk_i32 s11, {NSTR//4}')
    A('s_waitcnt lgkmcnt(0)')
    A('s_barrier')
    A('s_waitcnt vmcnt(10)')
    stamp(A, opt, 3)
    for k in range(5):
        b = RECB[k]
        A(f's_mov_b64 exec, {RMASK[k]}')
        if k > 1: A(f's_cbranch_execz k2_cnt{k}')
        A(f'v_lshlrev_b32_sdwa v{CADDR[k]}, 2, v{b+2} {SD} src0_sel:DWORD src1_sel:BYTE_3')
        A(f'ds_add_rtn_u32 v{b+3}, v{CADDR[k]}, v60 offset:{CNT}')
        A(f'v_mad_u32_u24 v{LIM[k]}, v{CADDR[k]}, s11, v61')
        if k > 1: A(f'k2_cnt{k}:')
    A('s_mov_b32 s10, 0')
    A('s_waitcnt lgkmcnt(0)')
    stamp(A, opt, 4)
    for k in range(5):
        b = RECB[k]; f = FM[k]
        A(f's_mov_b64 exec, {RMASK[k]}')
        A(f's_mov_b64 s[{f}:{f+1}], 0')
        A(f's_cbranch_execz k2_qa{k}')
        A(f'v_cmp_lt_u32 vcc, v{b+3}, v{LIM[k]}')
        A(f'v_and_b32 v{CADDR[k]}, 63, v{b+3}')
        A(f's_andn2_b64 {RMASK[k]}, exec, vcc')
        A('s_mov_b64 exec, vcc')
        A(f'ds_write_b96 v{b+3}, {r(b,3)}')
        A(f'v_cmp_eq_u32 s[{f}:{f+1}], 0, v{CADDR[k]}')
        A(f'v_mbcnt_lo_u32_b32 v{CADDR[k]}, s{f}, 0') if False else None
        A(f'v_mov_b32 v{CADDR[k]}, s10')
        A(f'v_mbcnt_lo_u32_b32 v{CADDR[k]}, s{f}, v{CADDR[k]}')
        A(f'v_mbcnt_hi_u32_b32 v{CADDR[k]}, s{f+1}, v{CADDR[k]}')
        A(f's_bcnt1_i32_b64 s39, s[{f}:{f+1}]'); A('s_add_u32 s10, s10, s39')
        A(f'k2_qa{k}:')
    A('s_lshl_b32 s10, s10, 3')
    A('s_mov_b64 exec, 1')
    A('v_mov_b32 v61, s10'); A('v_mov_b32 v60, 0')
    A(f'ds_add_rtn_u32 v61, v60, v61 offset:{CNT+252}')
    A(f's_or_b64 vcc, {RMASK[0]}, {RMASK[1]}')
    for k in range(2, 5): A(f's_or_b64 vcc, vcc, {RMASK[k]}')
    A('s_cbranch_scc1 k2_pend')
    for k in range(5): A(f's_mov_b64 {RMASK[k]}, -1')
    A('s_add_u32 s37, s37, 480')
    A('s_cmp_eq_u32 s41, 0'); A('s_cbranch_scc1 k2_noflag')
    A('k2_pend:')
    A(f'ds_write_b32 v60, v{TPI} offset:{CNT+248}')
    A('k2_noflag:')
    A('s_waitcnt lgkmcnt(0)')
    A('v_readfirstlane_b32 s10, v61')
    for k in range(5):
        b = RECB[k]; f = FM[k]
        A(f's_mov_b64 exec, s[{f}:{f+1}]')
        if k > 1: A(f's_cbranch_execz k2_qw{k}')
        A(f'v_lshl_add_u32 v{CADDR[k]}, v{CADDR[k]}, 3, s10')
        A(f'ds_write_b64 v{CADDR[k]}, {r(b+2,2)}')
        if k > 1: A(f'k2_qw{k}:')
    A('s_mov_b64 exec, -1')
    A('v_mov_b32 v60, 0')
    A('s_waitcnt lgkmcnt(0)')
    A('s_barrier')
    stamp(A, opt, 5)
    A(f'ds_read_b32 v{VLI}, v{TPI} offset:4')
    A(f'ds_read_b64 v[60:61], v60 offset:{CNT+248}')
    A(f'ds_read_b32 v{AA}, v{TPI} offset:{512+4}')
    A(f'ds_read_b32 v{VLE}, v{TPE} offset:4')
    A(f'ds_read_u16 v{QA}, v{TPI} offset:2')
    A('s_waitcnt lgkmcnt(4)')
    for s in range(4): A(f'ds_read_u16 v{WP+2*s}, v{VLI} offset:{16*s+8}')
    A('s_waitcnt lgkmcnt(4)')
    A('v_readfirstlane_b32 s38, v61'); A('v_readfirstlane_b32 s41, v60')
    A(f'v_mov_b32 v{VLI}, v{AA}')
    A(f'v_xor_b32 v{QA}, v{QA}, v{WP+1}')
    A(f's_add_u32 s38, s38, {31 - QT}'); A('s_lshr_b32 s38, s38, 5')
    A('s_sub_u32 s38, s38, s36'); A('s_add_u32 s38, s38, 15'); A('s_lshr_b32 s38, s38, 4')
    A('s_waitcnt vmcnt(0) lgkmcnt(0)')
    for s in range(4): gather(A, s)
    A(f'ds_read_b32 v{VLI}, v{TPI} offset:{2*512+4}')
    A(f'ds_read_b32 v{VLE}, v{TPE} offset:{512+4}')
    stamp(A, opt, 6)
    A('s_cmp_eq_u32 s48, 0'); A('s_cbranch_scc1 k2_r7')
    for s in range(4): A(f'ds_read_b128 {r(96+4*s,4)}, v{46+s}')
    A('v_pk_max_u16 v56, v56, v57')
    A(f'v_max_u32_sdwa v56, v56, v56 {SD} src0_sel:WORD_0 src1_sel:WORD_1')
    A('v_mov_b32 v57, 0')
    for rt in range(2):
        for s in range(4):
            A(f's_waitcnt lgkmcnt({3 if rt == 0 else 3 - s})')
            for t in range(2):
                a = UU + 8 * rt + 4 * t
                c = '0' if s == 0 else r(a, 4)
                A(f'v_mfma_f32_16x16x32_bf16 {r(a,4)}, {r(64+16*t+4*s,4)}, {r(96+4*s,4)}, {c}')
            if rt == 0: A(f'ds_read_b128 {r(96+4*s,4)}, v{46+s} offset:4096')
    for sh in DPPS: A(f'v_max_u32_dpp v56, v56, v56 {sh}')
    for j in range(8): A(f'v_pk_mul_f32 {r(UU+2*j,2)}, {r(UU+2*j,2)}, s[46:47]')
    A('s_cmp_gt_u32 s36, 7'); A('s_cbranch_scc1 k2_noq')
    for rt in range(2):
        if rt == 1: A('s_mov_b32 exec_lo, s49'); A('s_mov_b32 exec_hi, s49')
        for t in range(2):
            a = UU + 8 * rt + 4 * t
            A(f'ds_write_b128 v54, {r(a,4)} offset:{4096*rt + QH*t}')
            A(f'v_max3_f32 v57, v57, |v{a}|, |v{a+1}|'); A(f'v_max3_f32 v57, v57, |v{a+2}|, |v{a+3}|')
    A('s_mov_b64 exec, -1')
    for sh in DPPS: A(f'v_max_u32_dpp v57, v57, v57 {sh}')
    A('k2_noq:')
    A('s_lshr_b32 s10, s36, 3'); A('s_lshl_b32 s10, s10, 2'); A('v_mov_b32 v62, s10')
    A('s_mov_b32 exec_lo, 0'); A('s_mov_b32 exec_hi, 0x80000000')
    A(f'ds_max_u32 v62, v56 offset:{CNT+240}')
    A(f'ds_max_u32 v62, v57 offset:{CNT+232}')
    A('s_mov_b64 exec, -1')
    A('s_lshl_b32 s10, s36, 10'); A(f's_add_u32 m0, s10, {WU2}')
    A('s_mov_b32 s11, 65536')
    for s in range(1, 3): A(f'v_mov_b64 {r(RING+8*s+6,2)}, v[38:39]'); A(f'v_mov_b64 {r(RING+8*s+8,2)}, v[40:41]')
    A(f'v_mov_b64 {r(RING+30,2)}, v[38:39]')
    A('k2_r7:')
    A(f'v_subrev_u32 v74, {QT}, v{TPI}'); A('v_lshrrev_b32 v74, 3, v74')
    A('v_bfe_i32 v75, v74, 0, 3'); A('v_lshlrev_b32 v75, 4, v75'); A('v_xor_b32 v75, v75, v7'); A('v_and_b32 v75, 0xf0, v75')
    A('v_lshl_add_u32 v75, v74, 8, v75')
    A(f'v_mul_u32_u24 v79, {NSTR}, v74')
    A('v_lshlrev_b32 v74, 2, v74')
    A('v_mov_b32 v72, 0')
    A('s_waitcnt lgkmcnt(0)')
    A('s_barrier')
    stamp(A, opt, 7)
    A(f'ds_read_b128 v[64:67], v72 offset:{CNT+232}') if False else None
    A(f'ds_read2_b32 v[64:65], v72 offset0:0 offset1:0') if False else None
    A(f'ds_read_b64 v[64:65], v72 offset:{CNT+240}')
    A(f'ds_read_b32 v66, v72 offset:{CNT+232}')
    A(f'ds_read_b32 v74, v74 offset:{CNT}')
    A(f'ds_read_b128 {r(ZC,4)}, v75'); A(f'ds_read_b128 {r(ZC+4,4)}, v75 offset:{QH}')
    A(f'ds_read_b128 {r(QQ,4)}, v{QA}')
    A(f'ds_read_b128 {r(QQ+4,4)}, v{QA} offset:{QH}')
    A('s_cmp_eq_u32 s48, 0'); A('s_cbranch_scc1 k2_r8')
    A('buffer_load_dwordx4 v33, s[20:23], s11 offen lds')
    A(f's_add_u32 m0, s10, {WU2+16384}')
    A('s_mov_b32 s11, 81920')
    A('buffer_load_dwordx4 v33, s[20:23], s11 offen lds')
    A('s_waitcnt lgkmcnt(5)')
    A('v_lshlrev_b32 v64, 16, v64'); A('v_lshlrev_b32 v65, 16, v65')
    A('v_mul_f32 v64, s42, v64'); A('v_add_f32 v65, v65, v66'); A('v_add_f32 v64, v64, v65')
    A(f'v_mov_b64 {r(RING,2)}, v[40:41]')
    A('v_readfirstlane_b32 s10, v64')
    A('s_mov_b32 s40, s41')
    A(f's_cmp_gt_u32 s10, {f32hex(30.0)}'); A('s_cselect_b32 s40, 1, s40')
    A('s_lshr_b32 s10, s10, 23')
    A('s_cmp_lt_u32 s10, 32'); A('s_cselect_b32 s40, 1, s40')
    A('s_lshl_b32 s10, s10, 23')
    A(f's_add_u32 s44, s10, {(5 << 23) | 0x400000}'); A('s_mov_b32 s45, s44')
    A(f's_sub_u32 s46, s10, {18 << 23}'); A('s_mov_b32 s47, s46')
    A('s_sub_u32 s42, 0, s44'); A('s_subb_u32 s43, 0, s44')
    A('k2_r8:')
    A('s_mov_b64 exec, s[60:61]')
    A('s_cbranch_execz k2_pc_done')
    A('s_waitcnt lgkmcnt(2)')
    A('v_sub_u32 v74, v74, v79'); A(f'v_subrev_u32 v74, {ENT}, v74'); A(f'v_min_u32 v74, {NSTR}, v74')
    A('v_add_u32 v78, 48, v74'); A('v_lshrrev_b32 v78, 6, v78')
    A('v_lshlrev_b32 v76, 6, v78'); A('v_sub_u32 v76, v74, v76')
    A('v_cvt_f32_i32 v76, v76'); A(f'v_mul_f32 v76, {f32hex(1/16)}, v76'); A('v_mov_b32 v77, v76')
    for j in range(8): A(f'v_exp_f32 v{TT+j}, v{ZC+j}')
    for x in pk('v_pk_mul_f32', ZC, ZC, 'v[76:77]'): A(x)
    for x in pk('v_pk_add_f32', TT, TT, '1.0', mod='op_sel_hi:[1,0]'): A(x)
    for j in range(8): A(f'v_rcp_f32 v{TT+j}, v{TT+j}')
    A('s_cmp_lg_u32 s40, 0'); A('s_cbranch_scc1 k2_pc_x')
    A('v_add_u32 v78, 1, v78')
    A('v_mad_u64_u32 v[76:77], vcc, v78, s42, 0')
    A('v_mul_lo_u32 v78, v78, s43'); A('v_add_u32 v77, v77, v78')
    for x in pk('v_pk_fma_f32', ZC, ZC, TT, 's[44:45]'): A(x)
    for j in range(4): A(f'v_lshl_add_u64 {r(ZC+2*j,2)}, {r(ZC+2*j,2)}, 0, v[76:77]')
    agg_add(A, 75, ZC, False)
    A('s_branch k2_pc_done')
    A('k2_pc_x:')
    for x in pk('v_pk_mul_f32', ZC, ZC, TT): A(x)
    agg_add(A, 75, ZC, True)
    A('k2_pc_done:')
    A('s_mov_b64 exec, -1')
    A('s_cmp_eq_u32 s38, 0'); A('s_cbranch_scc1 k2_loop_done')
    A('s_waitcnt vmcnt(3) lgkmcnt(0)')
    stamp(A, opt, 8)
    for x in mfma_pair(0, ZN): A(x)
    A('s_cmp_lg_u32 s40, 0'); A('s_cbranch_scc1 k2_exact')
    A('s_setprio 3')
    for ex, nm in ((False, 'f'), (True, 'x')):
        if ex: A('k2_exact:')
        A('s_cmp_eq_u32 s38, 1'); A(f's_cbranch_scc1 k2_last_{nm}')
        A(f'k2_loop_{nm}:')
        body(A, True, ex)
        A('s_sub_u32 s38, s38, 1')
        if not ex:
            A('s_cmp_gt_u32 s38, 3'); A(f's_cbranch_scc1 k2_loop_{nm}')
            A('s_setprio 2')
            A('s_cmp_gt_u32 s38, 2'); A(f's_cbranch_scc1 k2_loop_{nm}')
            A('s_setprio 1')
        A('s_cmp_gt_u32 s38, 1'); A(f's_cbranch_scc1 k2_loop_{nm}')
        A(f'k2_last_{nm}:')
        if not ex: A('s_setprio 0')
        body(A, False, ex)
        if not ex: A('s_branch k2_epi')
    A('k2_loop_done:')
    A('s_cmp_eq_u32 s41, 0'); A('s_cbranch_scc1 k2_epi')
    A('s_mov_b32 s48, 0')
    tid(A, 0)
    A('s_waitcnt vmcnt(0) lgkmcnt(0)')
    A('s_barrier')
    A('s_branch k2_round')
    A('k2_epi:')
    stamp(A, opt, 9)
    tid(A, 0)
    A('v_lshrrev_b32 v4, 4, v0')
    A('v_bfe_i32 v5, v4, 0, 3'); A('v_lshlrev_b32 v5, 4, v5'); A('v_xor_b32 v5, v5, v7'); A('v_and_b32 v5, 0xf0, v5')
    A('v_lshl_add_u32 v5, v4, 8, v5')
    A('v_lshlrev_b32 v6, 4, v0'); A('v_and_b32 v4, 0xf0, v0'); A('v_xor_b32 v6, v6, v4')
    A('s_waitcnt vmcnt(0) lgkmcnt(0)')
    A('s_barrier')
    stamp(A, opt, 10)
    A('s_mov_b64 exec, s[60:61]')
    A('s_cbranch_execz k2_p1_done')
    A(f'ds_read_b128 v[64:67], v5 offset:{AG0}'); A(f'ds_read_b128 v[68:71], v5 offset:{AG1}')
    A('s_waitcnt lgkmcnt(0)')
    A('s_cmp_lg_u32 s40, 0'); A('s_cbranch_scc1 k2_p1_x')
    for j in range(8): A(f'v_cvt_f32_i32 v{64+j}, v{64+j}')
    for x in pk('v_pk_mul_f32', 64, 64, 's[46:47]'): A(x)
    A('k2_p1_x:')
    for j in range(4): A(f'v_cvt_pk_bf16_f32 v{72+j}, v{64+2*j}, v{65+2*j}')
    A(f'ds_write_b128 v6, v[72:75] offset:{AGB}')
    A('k2_p1_done:')
    A('s_mov_b64 exec, -1')
    A('s_cmp_gt_u32 s36, 7'); A('s_cbranch_scc1 k2_p2')
    A('s_waitcnt lgkmcnt(0)')
    A('s_barrier')
    A('s_branch k2_fin')
    A('k2_p2:')
    A('v_and_b32 v1, 63, v0')
    A('s_and_b32 s11, s36, 3'); A('s_lshl_b32 s10, s11, 13'); A(f's_add_u32 s10, s10, {WU2}')
    A('v_lshl_add_u32 v1, v1, 4, s10')
    for k in range(8): A(f'ds_read_b128 {r(32+4*k,4)}, v1 offset:{1024*k}')
    baddr(14, AGB)
    A('v_and_b32 v19, 15, v0'); A('v_and_b32 v18, 0x30, v0'); A('v_lshl_add_u32 v18, v19, 8, v18')
    A('s_lshl_b32 s11, s11, 6'); A('s_add_u32 s11, s11, s10'); A(f's_mul_i32 s10, s3, {BS*256}'); A('s_add_u32 s11, s11, s10')
    A('s_add_u32 s10, s11, 4096')
    A(f's_mov_b32 s46, {NLN2}'); A('s_mov_b32 s47, s46')
    A('s_waitcnt lgkmcnt(0)')
    A('s_barrier')
    for rt in range(2):
        for s in range(4):
            A(f'ds_read_b128 {r(64+16*rt+4*s,4)}, v{14+s} offset:{4096*rt}')
    for rt in range(2):
        for s in range(4):
            A(f's_waitcnt lgkmcnt({7-4*rt-s})')
            for t in range(2):
                a = UU + 8 * rt + 4 * t
                A(f'v_mfma_f32_16x16x32_bf16 {r(a,4)}, {r(32+16*t+4*s,4)}, {r(64+16*rt+4*s,4)}, {r(a,4)}')
    for rt in range(2):
        u = UU + 8 * rt; t = 96 + 8 * rt
        if rt == 1: A('s_mov_b32 exec_lo, s49'); A('s_mov_b32 exec_hi, s49')
        for j in range(8): A(f'v_exp_f32 v{t+j}, v{u+j}')
        for x in pk('v_pk_mul_f32', u, u, 's[46:47]'): A(x)
        for x in pk('v_pk_add_f32', t, t, '1.0', mod='op_sel_hi:[1,0]'): A(x)
        for j in range(8): A(f'v_rcp_f32 v{t+j}, v{t+j}')
        for x in pk('v_pk_mul_f32', u, u, t): A(x)
        for j in range(4): A(f'v_cvt_pk_bf16_f32 v{24+4*rt+j}, v{u+2*j}, v{u+2*j+1}')
        A(f'buffer_store_dwordx4 {r(24+4*rt,4)}, v18, s[28:31], s{11-rt} offen {opt.get("k2_store_mods","")}')
    A('k2_fin:')
    stamp_end(A, opt, 11, 8, WS_STAMP2)
    A('k2_end:')
    A('s_endpgm')
    return LDS_TOTAL, 128
```

```python
from asmlib import *
from consts import *

def emit_k1(A, opt):
    st = opt.get('k1_store_mods', '')
    A.start('k1_kernel')
    A(f's_cmp_ge_u32 s2, {K1_WGS}'); A('s_cbranch_scc1 k1_end')
    A('s_load_dwordx4 s[4:7], s[0:1], 0')
    A('s_load_dwordx4 s[8:11], s[0:1], 16')
    A('s_load_dwordx4 s[12:15], s[0:1], 32')
    A('s_load_dwordx2 s[16:17], s[0:1], 64')
    stamp(A, opt, 0)
    A(f's_cmp_ge_u32 s2, {NCH}'); A('s_cbranch_scc1 k1_gemm')
    A('v_lshlrev_b32 v1, 2, v0')
    A('v_mov_b32 v2, 0')
    A('ds_write_b32 v1, v2')
    A(f's_mul_i32 s3, s2, {CH}')
    A(f's_sub_u32 s18, {E}, s3'); A(f's_min_u32 s18, s18, {CH}')
    A('v_lshlrev_b32 v2, 4, v0')
    A('v_lshlrev_b32 v3, 5, v0')
    A('v_and_b32 v52, 63, v0')
    A('v_lshlrev_b32 v52, 4, v52')
    A('s_lshl_b32 s19, s3, 2'); A('s_lshl_b32 s20, s3, 3')
    for i in range(4): A(f'v_mov_b64 v[{12+2*i}:{13+2*i}], 0')
    A(f's_mul_i32 s43, s2, {CHB}')
    A('s_waitcnt lgkmcnt(0)')
    stamp(A, opt, 1)
    A.srd(24, 10, E * 4); A.srd(28, 8, E * 4); A.srd(32, 6, E * 8)
    A.srd(36, 16, NCH * CHB, off=WS_REC)
    A('v_cmp_gt_u32 vcc, s18, v1')
    A('s_and_saveexec_b64 s[22:23], vcc')
    A('s_cbranch_execz k1_bin_idle')
    A('buffer_load_dwordx4 v[4:7], v2, s[24:27], s19 offen')
    A(f's_mov_b32 s40, {MAGIC}'); A(f's_mov_b32 s41, -{BS}')
    A('v_mov_b32 v31, 12')
    A('s_mov_b64 s[22:23], exec')
    if opt.get('k1ord'): A('s_barrier')
    A('buffer_load_dwordx4 v[8:11], v2, s[28:31], s19 offen')
    A('buffer_load_dwordx4 v[12:15], v3, s[32:35], s20 offen')
    A('buffer_load_dwordx4 v[16:19], v3, s[32:35], s20 offen offset:16')
    if not opt.get('k1ord'): A('s_barrier')
    A('s_waitcnt vmcnt(3)')
    stamp(A, opt, 2)
    for i in range(4):
        A(f'v_mul_u32_u24 v{32+i}, s40, v{4+i}')
    for i in range(4):
        A(f'v_lshrrev_b32 v{32+i}, 20, v{32+i}')
    for i in range(4):
        A(f'v_lshlrev_b32 v{36+i}, 2, v{32+i}')
        A(f'ds_add_rtn_u32 v{40+i}, v{36+i}, v31')
    for i in range(4):
        A(f'v_mad_i32_i24 v{4+i}, v{32+i}, s41, v{4+i}')
        A(f'v_bfe_i32 v{32+i}, v{4+i}, 0, 3')
        A(f'v_and_b32 v{32+i}, 15, v{32+i}')
        A(f'v_lshl_or_b32 v{4+i}, v{4+i}, 4, v{32+i}')
    A('s_waitcnt lgkmcnt(0)')
    A('s_barrier')
    stamp(A, opt, 3)
    A('s_mov_b64 exec, -1')
    def scan():
        A('ds_read_b128 v[44:47], v52')
        A('s_waitcnt lgkmcnt(0)')
        A('v_add_u32 v49, v44, v45')
        A('v_add_u32 v50, v49, v46')
        A('v_add_u32 v51, v50, v47')
        A('v_mov_b32 v48, v51')
        for sh in ('row_shr:1', 'row_shr:2', 'row_shr:4', 'row_shr:8', 'row_bcast:15 row_mask:0xa', 'row_bcast:31 row_mask:0xc'):
            A(f'v_add_u32_dpp v48, v48, v48 {sh}')
        A('v_sub_u32 v48, v48, v51')
        A('v_add_u32 v51, v48, v50')
        A('v_add_u32 v50, v48, v49')
        A('v_add_u32 v49, v48, v44')
    scan()
    A('ds_write_b128 v52, v[48:51] offset:1024')
    A('s_mov_b64 exec, s[22:23]')
    for i in range(4):
        A(f'ds_read_b32 v{36+i}, v{36+i} offset:1024')
    A('s_waitcnt vmcnt(2)')
    for i in range(4):
        A(f'v_lshl_or_b32 v{4+i}, v{4+i}, 20, v{8+i}')
    A('s_waitcnt lgkmcnt(0)')
    for i in range(4):
        A(f'v_add_u32 v{40+i}, v{40+i}, v{36+i}')
        A(f'ds_write_b32 v{40+i}, v{4+i} offset:2056')
    A('s_waitcnt vmcnt(0)')
    for i in range(4):
        A(f'v_add_u32 v{40+i}, 0x800, v{40+i}')
        A(f'ds_write2_b32 v{40+i}, v{12+2*i}, v{13+2*i} offset1:1')
    A('s_mov_b64 exec, -1')
    A('s_waitcnt lgkmcnt(0)')
    stamp(A, opt, 4)
    A('s_branch k1_bin_join')
    A('k1_bin_idle:')
    A('s_mov_b64 exec, -1')
    if opt.get('cpf'):
        A('s_getpc_b64 s[44:45]')
        A('k1_pc:')
        A('s_sub_u32 s44, s44, k1_pc-k1_kernel'); A('s_subb_u32 s45, s45, 0')
        A('s_mov_b32 s46, code_end-k1_kernel'); A('s_mov_b32 s47, 0x00020000')
        A('v_subrev_u32 v60, 832, v0'); A('v_lshlrev_b32 v60, 6, v60')
        A('buffer_load_dword v61, v60, s[44:47], 0 offen')
    A('s_barrier')
    A('s_barrier')
    A('v_cmp_lt_u32 vcc, 959, v0')
    A('s_cbranch_vccz k1_bin_join')
    scan()
    A.srd(24, 16, NCH * 1024, off=WS_TAB)
    A('s_lshl_b32 s19, s2, 10')
    for i in range(4):
        A(f'v_lshl_or_b32 v{48+i}, v{44+i}, 16, v{48+i}')
    A(f'buffer_store_dwordx4 v[48:51], v52, s[24:27], s19 offen {st}')
    A('k1_bin_join:')
    A('s_barrier')
    stamp(A, opt, 5)
    A('ds_read_b128 v[4:7], v2 offset:2048')
    A('ds_read_b128 v[8:11], v2 offset:18432')
    A('s_add_u32 s44, s43, 16384'); A('s_add_u32 s45, s43, 32768')
    A(f'v_cmp_gt_u32 vcc, {(CH*12-32768)//16}, v0')
    A('s_cbranch_vccz k1_bin_two')
    A('s_mov_b64 exec, vcc')
    A('ds_read_b128 v[20:23], v2 offset:34816')
    A('s_waitcnt lgkmcnt(0)')
    A(f'buffer_store_dwordx4 v[20:23], v2, s[36:39], s45 offen {st}')
    A('s_mov_b64 exec, -1')
    A('k1_bin_two:')
    A('s_waitcnt lgkmcnt(1)')
    A(f'buffer_store_dwordx4 v[4:7], v2, s[36:39], s43 offen {st}')
    A('s_waitcnt lgkmcnt(0)')
    A(f'buffer_store_dwordx4 v[8:11], v2, s[36:39], s44 offen {st}')
    A('s_mov_b32 s40, 0x7fff7fff')
    for i in range(8): A(f'v_and_b32 v{12+i}, s40, v{12+i}')
    for i in range(4): A(f'v_pk_max_u16 v{12+i}, v{12+i}, v{16+i}')
    A('v_pk_max_u16 v12, v12, v13'); A('v_pk_max_u16 v14, v14, v15'); A('v_pk_max_u16 v12, v12, v14')
    A('v_max_u32_sdwa v12, v12, v12 dst_sel:DWORD dst_unused:UNUSED_PAD src0_sel:WORD_0 src1_sel:WORD_1')
    for sh in DPPS: A(f'v_max_u32_dpp v12, v12, v12 {sh}')
    A.srd(28, 16, MAXT_BYTES, off=WS_MAXT)
    A('v_lshrrev_b32 v13, 5, v0'); A('v_and_b32 v13, 30, v13')
    A('s_lshl_b32 s23, s2, 5')
    A('s_mov_b32 exec_lo, 0'); A('s_mov_b32 exec_hi, 0x80000000')
    A('buffer_store_short v12, v13, s[28:31], s23 offen')
    stamp_end(A, opt, 6, 16, WS_STAMP)
    A('s_endpgm')
    A('k1_gemm:')
    A(f's_sub_u32 s3, s2, {NCH}')
    A('v_lshlrev_b32 v1, 4, v0')
    A('v_lshrrev_b32 v2, 6, v0')
    A('v_and_b32 v3, 63, v0')
    A('v_readfirstlane_b32 s21, v2')
    A('s_waitcnt lgkmcnt(0)')
    stamp(A, opt, 1)
    A.srd(24, 12, 260 * 256)
    A('s_mov_b32 s18, 0')
    A(f's_cmp_lt_u32 s3, {NGEMM}'); A('s_cbranch_scc1 k1_g0')
    A('s_mov_b32 s18, 32768')
    A(f's_cmp_eq_u32 s3, {NGEMM}'); A('s_cbranch_scc1 k1_g0')
    A.srd(24, 14, 256 * 256)
    A(f's_sub_u32 s18, s3, {NGEMM+1}'); A('s_lshl_b32 s18, s18, 15')
    A('k1_g0:')
    A('s_add_u32 s19, s18, 16384')
    A('buffer_load_dwordx4 v[4:7], v1, s[24:27], s18 offen')
    A('buffer_load_dwordx4 v[8:11], v1, s[24:27], s19 offen')
    A.srd(28, 4, N * 256)
    A('v_and_b32 v12, 15, v3')
    A('v_lshrrev_b32 v13, 4, v3')
    A('v_lshlrev_b32 v14, 8, v12')
    A('v_lshl_add_u32 v14, v13, 4, v14')
    A('s_lshr_b32 s22, s21, 1')
    A('s_lshl_b32 s22, s22, 12')
    A('s_lshl_b32 s23, s3, 15')
    A('s_add_u32 s22, s22, s23')
    A(f's_cmp_ge_u32 s3, {NGEMM}'); A('s_cbranch_scc1 k1_g1')
    A('v_and_b32 v15, 0xf0, v0'); A('v_xor_b32 v15, v15, v1')
    A('s_lshl_b32 s19, s21, 10'); A('s_add_u32 m0, s19, 32768')
    A('s_add_u32 s18, s23, 16384')
    A('buffer_load_dwordx4 v15, s[28:31], s23 offen lds')
    A('s_add_u32 m0, s19, 49152')
    A('v_xor_b32 v28, v13, v12'); A('v_lshlrev_b32 v28, 4, v28'); A('v_lshl_add_u32 v28, v12, 8, v28')
    A('buffer_load_dwordx4 v15, s[28:31], s18 offen lds')
    A('s_sub_u32 s19, s22, s23'); A('s_add_u32 s19, s19, 32768'); A('v_add_u32 v28, s19, v28')
    for s in range(1, 4): A(f'v_xor_b32 v{28+s}, {64*s}, v28')
    A('k1_g1:')
    A('v_and_b32 v32, 0x30, v0')
    A('v_lshlrev_b32 v32, 2, v32')
    A('v_xor_b32 v32, v32, v1')
    A('v_lshrrev_b32 v33, 4, v0')
    A('v_and_b32 v33, 8, v33')
    A('v_xor_b32 v32, v32, v33')
    A('v_xor_b32 v33, 8, v32')
    A('v_bfe_u32 v34, v3, 2, 2')
    A('v_and_b32 v35, 3, v3')
    A('v_lshlrev_b32 v36, 3, v13')
    A('v_add_u32 v36, v36, v34')
    A('v_lshlrev_b32 v36, 8, v36')
    A('v_lshl_or_b32 v36, v35, 4, v36')
    A('v_lshlrev_b32 v34, 6, v34')
    A('v_xor_b32 v36, v36, v34')
    A('v_and_b32 v34, 1, v13')
    A('v_lshlrev_b32 v34, 3, v34')
    A('v_xor_b32 v36, v36, v34')
    A(f's_cmp_ge_u32 s3, {NGEMM}'); A('s_cbranch_scc1 k1_prep')
    A('s_and_b32 s35, s21, 1')
    A('s_lshl_b32 s36, s35, 7')
    A('v_xor_b32 v36, s36, v36')
    A('v_xor_b32 v37, 8, v36')
    A('v_xor_b32 v38, 64, v36')
    A('v_xor_b32 v39, 64, v37')
    A('s_waitcnt vmcnt(3)')
    A('ds_write_b64 v32, v[4:5]'); A('ds_write_b64 v33, v[6:7]')
    A('s_waitcnt vmcnt(2)')
    stamp(A, opt, 2)
    A('ds_write_b64 v32, v[8:9] offset:16384'); A('ds_write_b64 v33, v[10:11] offset:16384')
    A('s_waitcnt lgkmcnt(0)')
    A('s_barrier')
    stamp(A, opt, 3)
    for s in range(4):
        for t in range(4):
            r = 40 + 16 * s + 4 * t
            A(f'ds_read_b64_tr_b16 v[{r}:{r+1}], v{36+t} offset:{8192*s}')
            A(f'ds_read_b64_tr_b16 v[{r+2}:{r+3}], v{36+t} offset:{8192*s+1024}')
    A('s_waitcnt vmcnt(0)')
    A('s_barrier')
    for s in range(4): A(f'ds_read_b128 v[{16+4*s}:{19+4*s}], v{28+s}')
    for s in range(4):
        A(f's_waitcnt lgkmcnt({3-s})')
        for t in range(4):
            r = 40 + 16 * s + 4 * t
            c = '0' if s == 0 else f'v[{104+4*t}:{107+4*t}]'
            A(f'v_mfma_f32_16x16x32_bf16 v[{104+4*t}:{107+4*t}], v[{r}:{r+3}], v[{16+4*s}:{19+4*s}], {c}')
    stamp(A, opt, 4)
    A.srd(24, 16, PROWS * 256, off=WS_P)
    A(f's_mov_b32 s40, {NLOG2E}'); A('s_mov_b32 s41, s40')
    A('s_add_u32 s22, s22, s36')
    for t in range(8):
        A(f'v_pk_mul_f32 v[{104+2*t}:{105+2*t}], v[{104+2*t}:{105+2*t}], s[40:41]')
    for t in range(8):
        A(f'v_cvt_pk_bf16_f32 v{4+t}, v{104+2*t}, v{105+2*t}')
    A(f'buffer_store_dwordx4 v[4:7], v14, s[24:27], s22 offen {st}')
    A(f'buffer_store_dwordx4 v[8:11], v14, s[24:27], s22 offen offset:64 {st}')
    stamp(A, opt, 5)
    A('v_max3_f32 v40, |v104|, |v105|, |v106|')
    for t in range(6):
        A(f'v_max3_f32 v40, v40, |v{107+2*t}|, |v{108+2*t}|')
    A('v_max_f32 v40, v40, |v119|')
    for sh in DPPS: A(f'v_max_u32_dpp v40, v40, v40 {sh}')
    A('v_lshrrev_b32 v40, 16, v40'); A('v_add_u32 v40, 1, v40')
    A.srd(28, 16, MAXT_BYTES, off=WS_MAXT)
    A('s_lshl_b32 s23, s2, 4'); A('s_add_u32 s23, s23, s21'); A('s_lshl_b32 s23, s23, 1')
    A('s_mov_b32 exec_lo, 0'); A('s_mov_b32 exec_hi, 0x80000000')
    A('buffer_store_short v40, off, s[28:31], s23')
    stamp_end(A, opt, 6, 16, WS_STAMP)
    A('s_endpgm')
    A('k1_prep:')
    A('s_lshr_b32 s35, s21, 1')
    A('s_lshr_b32 s36, s35, 1'); A('s_lshl_b32 s36, s36, 6')
    A('s_and_b32 s37, s35, 1'); A('s_lshl_b32 s37, s37, 3'); A('s_or_b32 s36, s36, s37')
    A('v_xor_b32 v36, s36, v36')
    A('s_and_b32 s37, s21, 1'); A('s_lshl_b32 s37, s37, 14')
    A('v_add_u32 v36, s37, v36')
    A('s_waitcnt vmcnt(1)')
    A('ds_write_b64 v32, v[4:5]'); A('ds_write_b64 v33, v[6:7]')
    A('s_waitcnt vmcnt(0)')
    A('ds_write_b64 v32, v[8:9] offset:16384'); A('ds_write_b64 v33, v[10:11] offset:16384')
    A('s_waitcnt lgkmcnt(0)')
    A('s_barrier')
    A('ds_read_b64_tr_b16 v[40:41], v36'); A('ds_read_b64_tr_b16 v[42:43], v36 offset:1024')
    A('ds_read_b64_tr_b16 v[44:45], v36 offset:8192'); A('ds_read_b64_tr_b16 v[46:47], v36 offset:9216')
    A.srd(28, 16, 3 * 32768 + 2048, off=WS_FR)
    A(f's_sub_u32 s23, s3, {NGEMM}'); A('s_lshl_b32 s23, s23, 15')
    A('s_lshl_b32 s22, s21, 11'); A('s_add_u32 s23, s23, s22')
    A('v_lshlrev_b32 v4, 4, v3')
    A('s_waitcnt lgkmcnt(0)')
    A(f'buffer_store_dwordx4 v[40:43], v4, s[28:31], s23 offen {st}')
    A(f'buffer_store_dwordx4 v[44:47], v4, s[28:31], s23 offen offset:1024 {st}')
    A(f's_cmp_lg_u32 s3, {NGEMM}'); A('s_cbranch_scc1 k1_end')
    A('s_cmp_lg_u32 s21, 0'); A('s_cbranch_scc1 k1_end')
    A('v_lshlrev_b32 v5, 4, v12'); A('v_lshl_add_u32 v5, v13, 1, v5')
    A('s_mov_b32 s18, 65536')
    for d in range(4):
        A(f'buffer_load_ushort v{16+d}, v5, s[24:27], s18 offen offset:{256*d}')
        A(f'buffer_load_ushort v{20+d}, v5, s[24:27], s18 offen offset:{256*d+8}')
    A(f's_mov_b32 s40, {NLOG2E}')
    A('s_waitcnt vmcnt(0)')
    for d in range(8):
        A(f'v_lshlrev_b32 v{16+d}, 16, v{16+d}')
        A(f'v_mul_f32 v{16+d}, s40, v{16+d}')
    for d in range(4):
        A(f'v_cvt_pk_bf16_f32 v{24+(d^2)}, v{16+2*d}, v{17+2*d}')
    A('s_mov_b32 s18, 98304')
    A(f'buffer_store_dwordx4 v[24:27], v4, s[28:31], s18 offen {st}')
    for d in range(4):
        A(f'v_max_f32 v{16+d}, |v{16+d}|, |v{20+d}|')
    for sh in ('row_shr:1', 'row_shr:2', 'row_shr:4', 'row_shr:8', 'row_bcast:15 row_mask:0xa', 'row_bcast:31 row_mask:0xc'):
        for d in range(4):
            A(f'v_max_u32_dpp v{16+d}, v{16+d}, v{16+d} {sh}')
    A('v_add_f32 v16, v16, v17'); A('v_add_f32 v18, v18, v19'); A('v_add_f32 v16, v16, v18')
    A(f'v_mul_f32 v16, {f32hex(1.01)}, v16')
    A('s_mov_b32 exec_lo, 0'); A('s_mov_b32 exec_hi, 0x80000000')
    A('s_mov_b32 s18, 99328')
    A(f'buffer_store_dword v16, off, s[28:31], s18 {st}')
    A('k1_end:')
    A('s_endpgm')
```

```python
N = 12500; E = 400000
NB = 256; BS = 49; CH = 1564
CHP = 18816
CHB = 2 * CHP
MAGIC = 21400
PROWS = NB * BS
WS_P = 0
WS_TAB = 0x340000
PF_OFF = NB * 2048
TAB_BYTES = PF_OFF + NB * 16
WS_REC = 0x400000
WS_STAMP = 0xE00000
NLOG2E = '0xbfb8aa3b'
NLN2 = '0xbf317218'
DPPS = ('row_shr:1', 'row_shr:2', 'row_shr:4', 'row_shr:8', 'row_bcast:15 row_mask:0xa', 'row_bcast:31 row_mask:0xc')
NSTAMP = 16
assert WS_TAB + TAB_BYTES <= WS_REC and WS_REC + NB * CHB <= WS_STAMP and PROWS * 256 <= WS_TAB
```

```python
from asmlib import *
from consts3 import *

Q0 = 0; QH = 12800; AG0 = 25600; AG1 = 38400; CNT = 51200
QT = 51456; QTB = 8192
ENT = QT + QTB; CAP = 72; NSTR = CAP * 16; ENTB = 57344
WU = ENT + ENTB; XT = WU + 32768; W3S = XT + BS * 256; LDS_TOTAL = W3S + 1024
STG = WU + 2048
AGB = 0
PADIDX = 0xffff; DUMMYKEY = 49 << 24; DUMMYADDR = ENT + BS * NSTR
assert DUMMYADDR + 64 <= ENT + ENTB and ENT % 64 == 0 and NSTR % 64 == 0 and (BS * CAP // 4 + 4) * 8 <= QTB
assert WU % 256 == 0 and XT % 256 == 0 and LDS_TOTAL <= 163840 and STG + CHP <= XT
C_ARRB, C_ARRP, C_EM, C_PM, C_ARRX = 50, 51, 52, 53, 54
C_CLAIM, C_SW, C_Q, C_E, C_P, C_MISS, C_MORE, C_QT = 56, 57, 58, 59, 60, 61, 62, 63

TPI, VLI, VLE, QA, AA, TPE = 0, 1, 2, 3, 4, 5
WP = 6
AR = 14; RING = 32
ZN, ZB, ZC, DD, TT, QQ, UU = 64, 72, 80, 88, 96, 104, 112
NK = 6
RECB = [64 + 4 * k for k in range(NK)]; CADDR = [88 + k for k in range(NK)]; LIM = [94 + k for k in range(NK)]
RMASK = ['s[4:5]', 's[6:7]', 's[8:9]', 's[10:11]', 's[12:13]', 's[96:97]']
FM = [98, 100, 40, 42, 44, 46]
SD = 'dst_sel:DWORD dst_unused:UNUSED_PAD'
AGO = [AG0, AG0 + 8, AG1, AG1 + 8]
SC = 'sc0 sc1'
W3C = '0x00020000'

def r(b, n): return f'v[{b}:{b+n-1}]'

def mfma_pair(step, z):
    e = AR + 2 + 4 * step; b = RING + 8 * step
    return [f'v_mfma_f32_16x16x32_bf16 {r(z,4)}, {r(e,4)}, {r(b,4)}, {r(QQ,4)}',
            f'v_mfma_f32_16x16x32_bf16 {r(z+4,4)}, {r(e-2,4)}, {r(b+4,4)}, {r(QQ+4,4)}']

def gather(A, step):
    A(f'buffer_load_dwordx4 {r(RING+8*step+2,4)}, {r(WP+2*step,2)}, s[24:27], 0 idxen offen {SC}')
    A('s_mov_b64 exec, s[62:63]')
    A(f'ds_read_b64 {r(AR+2+4*step,2)}, v{VLE} offset:{16*step}')
    A('s_mov_b64 exec, -1')
    A(f'ds_read_u16 v{WP+2*step}, v{VLI} offset:{16*step+8}')

def pk(op, d, a, b, c=None, mod=''):
    o = []
    for j in range(4):
        f = lambda x: x if isinstance(x, str) else r(x + 2 * j, 2)
        o.append(f'{op} {f(d)}, {f(a)}, {f(b)}' + (f', {f(c)}' if c is not None else '') + (' ' + mod if mod else ''))
    return o

def agg_add(A, addr, src, exact):
    if exact:
        for j in range(8): A(f'ds_add_f32 v{addr}, v{src+j} offset:{(AG0 if j < 4 else AG1) + 4*(j&3)}')
    else:
        for j in range(4): A(f'ds_add_u64 v{addr}, {r(src+2*j,2)} offset:{AGO[j]}')

def body(A, nxt, exact):
    Z = [ZN, ZB, ZC, ZB]
    na = 8 if exact else 4
    for s in range(4):
        z = Z[s]
        if s == 0:
            A(f's_waitcnt lgkmcnt({na})')
            if nxt:
                A(f'v_mov_b32 v{AA}, v{QA}')
                A(f'ds_read_u16 v{QA}, v{TPI} offset:{512+2}')
        if nxt: gather(A, s)
        if nxt and s == 3:
            A(f'ds_read_b32 v{VLI}, v{TPI} offset:{3*512+4}')
            A(f'ds_read_b32 v{VLE}, v{TPE} offset:{2*512+4}')
            A(f'v_add_u32 v{TPI}, 0x200, v{TPI}')
            A(f'v_add_u32 v{TPE}, 0x200, v{TPE}')
        ex = [f'v_exp_f32 v{TT+j}, v{z+j}' for j in range(8)]
        if s < 3:
            m = mfma_pair(s + 1, Z[s + 1])
            w = f's_waitcnt vmcnt({3 if nxt else 2 - s})'
            if s == 2 and nxt: w += ' lgkmcnt(6)'
            seq = ex[:2] + [w, m[0]] + ex[2:5] + [m[1]] + ex[5:]
        else:
            seq = ex
        for x in seq: A(x)
        if nxt and s == 2:
            A(f'v_xor_b32 v{QA}, v{QA}, v{WP+1}')
            A(f'ds_read_b128 {r(QQ,4)}, v{QA}')
            A(f'ds_read_b128 {r(QQ+4,4)}, v{QA} offset:{QH}')
        if not exact:
            if s == 0:
                for x in pk('v_pk_add_f32', DD, TT, '1.0', mod='op_sel_hi:[1,0]'): A(x)
            else:
                for x in pk('v_pk_fma_f32', z, z, DD, ZN): A(x)
                for x in pk('v_pk_fma_f32', DD, DD, TT, DD): A(x)
                for x in pk('v_pk_fma_f32', ZN, ZN, TT, z): A(x)
            if s == 3:
                for j in range(8): A(f'v_rcp_f32 v{DD+j}, v{DD+j}')
                for x in pk('v_pk_fma_f32', DD, ZN, DD, 's[44:45]'): A(x)
        else:
            for x in pk('v_pk_add_f32', TT, TT, '1.0', mod='op_sel_hi:[1,0]'): A(x)
            for j in range(8): A(f'v_rcp_f32 v{TT+j}, v{TT+j}')
            if s == 0:
                for x in pk('v_pk_mul_f32', DD, z, TT): A(x)
            else:
                for x in pk('v_pk_fma_f32', DD, z, TT, DD): A(x)
        if s == 3:
            if nxt:
                A('s_waitcnt vmcnt(3) lgkmcnt(4)')
                for x in mfma_pair(0, ZN): A(x)
            agg_add(A, AA if nxt else QA, DD, exact)

def tid(A, d):
    A(f'v_mbcnt_lo_u32_b32 v{d}, -1, 0'); A(f'v_mbcnt_hi_u32_b32 v{d}, -1, v{d}')
    A('s_lshl_b32 s56, s48, 6'); A(f'v_add_u32 v{d}, s56, v{d}')

def cnt_init(A, t):
    A(f'v_and_b32 v{t}, 63, v0'); A(f's_movk_i32 s56, {NSTR}'); A(f'v_mov_b32 v{t+1}, {ENT}')
    A(f'v_mad_u32_u24 v{t+1}, v{t}, s56, v{t+1}')
    A(f'v_cmp_gt_u32 vcc, {BS}, v{t}'); A(f'v_cndmask_b32 v{t+1}, 0, v{t+1}, vcc')
    A(f's_mov_b32 s56, {QT}'); A(f'v_writelane_b32 v{t+1}, s56, 63')
    A(f'v_lshlrev_b32 v{t}, 2, v{t}')
    A(f'ds_write_b32 v{t}, v{t+1} offset:{CNT}')

def kargs(A):
    A('s_load_dwordx16 s[4:19], s[0:1], 0')
    A('s_load_dwordx2 s[20:21], s[0:1], 64')

def srd_st(A, d, off, n):
    A(f's_add_u32 s{d}, s20, {off}'); A(f's_addc_u32 s{d+1}, s21, 0')
    A('s_cmp_eq_u32 s22, 2'); A(f's_cselect_b32 s{d+2}, 0, {n}'); A(f's_mov_b32 s{d+3}, {W3C}')

def nonce_load(A):
    A('s_mov_b32 s36, s18'); A('s_mov_b32 s37, s19'); A('s_movk_i32 s38, 256')
    A(f'buffer_load_dwordx2 v[14:15], off, s[36:39], 0 {SC}')

def emit(A, opt):
    name = 'gather_scatter__mpnn_edge_mlp__graph_kernel'
    TMO = int(opt.get('tmo', 400))
    A.start(name)
    A(f's_cmp_ge_u32 s2, {NB}'); A('s_cbranch_scc1 k3_end')
    kargs(A)
    stamp(A, opt, 0)
    A('s_and_b32 s3, s2, 7'); A('s_lshl_b32 s3, s3, 5'); A('s_lshr_b32 s23, s2, 3'); A('s_add_u32 s3, s3, s23')
    A('s_mov_b32 s22, 0'); A('s_mov_b32 s23, s3')
    if opt.get('mute'):
        A(f's_and_b32 s56, s2, {int(opt["mute"])}'); A('s_cmp_eq_u32 s56, 5'); A('s_cselect_b32 s22, 2, 0')
    if opt.get('cap'): A(f's_movk_i32 s66, {int(opt["cap"])}')
    A('k3_go:')
    A('v_lshrrev_b32 v1, 6, v0'); A('v_lshlrev_b32 v2, 4, v0'); A('v_readfirstlane_b32 s48, v1')
    A(f's_mov_b32 s39, {W3C}'); A(f's_mov_b32 s43, {W3C}'); A(f's_mov_b32 s47, {W3C}')
    A('s_cmp_lt_u32 s48, 8'); A('s_cbranch_scc1 k3_gemm')
    A('v_subrev_u32 v2, 0x2000, v2')
    A('v_mov_b64 v[4:5], 0'); A('v_mov_b64 v[6:7], 0')
    A('v_and_b32 v52, 0x3f0, v2')
    A(f's_mov_b32 s56, {WU}'); A('s_bitcmp1_b32 s48, 0'); A(f's_cselect_b32 s56, {AG0+24576}, s56')
    A('v_add_u32 v53, s56, v52')
    A('ds_write_b128 v53, v[4:7]')
    for k in range(3): A(f'ds_write_b128 v2, v[4:7] offset:{AG0+8192*k}')
    assert AG0 + 25 * 1024 == CNT
    A('s_cmp_eq_u32 s48, 15'); A('s_cbranch_scc1 k3_help')
    A(f's_mul_i32 s56, s23, {CH*4}')
    A(f's_sub_u32 s57, {E*4}, s56'); A(f's_min_u32 s57, s57, {CH*4}')
    A('v_cmp_gt_u32 s[58:59], s57, v2')
    A('s_lshl_b32 s57, s56, 1')
    A('v_lshlrev_b32 v3, 1, v2')
    A(f's_mov_b32 s38, {E*4}')
    A('s_waitcnt lgkmcnt(0)')
    if not opt.get('cap'): stamp(A, opt, 1)
    A('s_mov_b32 s36, s10'); A('s_mov_b32 s37, s11')
    A('s_mov_b64 exec, s[58:59]')
    A('buffer_load_dwordx4 v[4:7], v2, s[36:39], s56 offen')
    A('s_mov_b64 exec, -1')
    for i in range(4): A(f'v_mov_b64 v[{16+2*i}:{17+2*i}], 0')
    A('s_mov_b32 s40, s8'); A('s_mov_b32 s41, s9'); A(f's_mov_b32 s42, {E*4}')
    A('s_mov_b32 s44, s6'); A('s_mov_b32 s45, s7'); A(f's_mov_b32 s46, {E*8}')
    A('s_mov_b64 exec, s[58:59]')
    A('s_barrier')
    A('buffer_load_dwordx4 v[8:11], v2, s[40:43], s56 offen')
    A('buffer_load_dwordx4 v[16:19], v3, s[44:47], s57 offen')
    A('buffer_load_dwordx4 v[20:23], v3, s[44:47], s57 offen offset:16')
    A(f's_movk_i32 s56, {MAGIC}'); A(f's_movk_i32 s57, -{BS}'); A(f's_mov_b32 s60, {WU}')
    A('v_mov_b32 v12, 12')
    srd_st(A, 28, WS_REC, NB * CHB)
    A('s_waitcnt vmcnt(3)')
    stamp(A, opt, 2)
    for i in range(4): A(f'v_mul_u32_u24 v{32+i}, s56, v{4+i}')
    for i in range(4): A(f'v_lshrrev_b32 v{32+i}, 20, v{32+i}')
    for i in range(4):
        A(f'v_lshl_add_u32 v{36+i}, v{32+i}, 2, s60')
        A(f'ds_add_rtn_u32 v{40+i}, v{36+i}, v12')
    for i in range(4):
        A(f'v_mad_i32_i24 v{4+i}, v{32+i}, s57, v{4+i}')
        A(f'v_bfe_i32 v{32+i}, v{4+i}, 0, 3')
        A(f'v_and_b32 v{32+i}, 15, v{32+i}')
        A(f'v_lshl_or_b32 v{4+i}, v{4+i}, 4, v{32+i}')
    A('s_mov_b64 exec, -1')
    A('v_add_u32 v53, s60, v52')
    A('s_waitcnt lgkmcnt(0)')
    A('s_barrier')
    stamp(A, opt, 3)
    A('ds_read_b128 v[44:47], v53')
    nonce_load(A)
    A('s_waitcnt lgkmcnt(0)')
    A('v_add_u32 v49, v44, v45'); A('v_add_u32 v50, v49, v46'); A('v_add_u32 v48, v50, v47')
    A(f'v_subrev_u32 v51, {STG}, v48')
    for sh in DPPS: A(f'v_add_u32_dpp v48, v48, v48 {sh}')
    A('v_sub_u32 v48, v48, v51')
    A('v_add_u32 v51, v48, v50'); A('v_add_u32 v50, v48, v49'); A('v_add_u32 v49, v48, v44')
    A('ds_write_b128 v53, v[48:51] offset:1024')
    A('s_mov_b64 exec, s[58:59]')
    for i in range(4): A(f'ds_read_b32 v{36+i}, v{36+i} offset:1024')
    A('s_waitcnt vmcnt(3)')
    for i in range(4): A(f'v_lshl_or_b32 v{4+i}, v{4+i}, 20, v{8+i}')
    A('s_waitcnt lgkmcnt(0)')
    for i in range(4):
        A(f'v_add_u32 v{40+i}, v{40+i}, v{36+i}')
        A(f'ds_write_b32 v{40+i}, v{4+i} offset:8')
    A('s_waitcnt vmcnt(1)')
    for i in range(4): A(f'ds_write2_b32 v{40+i}, v{16+2*i}, v{17+2*i} offset1:1')
    A('s_mov_b64 exec, -1')
    A(f'v_add_u32 v53, {STG}, v2')
    A(f's_mul_i32 s56, s23, {CHB}')
    A('s_cmp_eq_u32 s22, 1'); A(f's_cselect_b32 s60, {CHP}, 0'); A('s_add_u32 s56, s56, s60')
    A('s_add_u32 s57, s56, 7168'); A('s_add_u32 s58, s56, 14336')
    A(f's_sub_u32 s60, s60, {STG}')
    A(f'v_cmp_gt_u32 vcc, {CHP-14336}, v2')
    A('s_waitcnt lgkmcnt(0)')
    A('s_barrier')
    stamp(A, opt, 4)
    for k in range(3): A(f'ds_read_b128 {r(64+4*k,4)}, v53 offset:{7168*k}')
    for k in range(3):
        A(f's_waitcnt lgkmcnt({2-k})')
        if k == 2: A('s_mov_b64 exec, vcc')
        A(f'buffer_store_dwordx4 {r(64+4*k,4)}, v2, s[28:31], s{56+k} offen {SC}')
    A('s_mov_b64 exec, -1')
    stamp(A, opt, 5)
    A('s_mov_b32 s56, 0x7fff7fff')
    for i in range(8): A(f'v_and_b32 v{16+i}, s56, v{16+i}')
    for i in range(4): A(f'v_pk_max_u16 v{16+i}, v{16+i}, v{20+i}')
    A('v_pk_max_u16 v16, v16, v17'); A('v_pk_max_u16 v18, v18, v19'); A('v_pk_max_u16 v13, v16, v18')
    A(f'v_max_u32_sdwa v13, v13, v13 {SD} src0_sel:WORD_0 src1_sel:WORD_1')
    for i in range(4):
        A(f'v_add_u32 v{48+i}, s60, v{48+i}'); A(f'v_lshrrev_b32 v{48+i}, 2, v{48+i}')
        A(f'v_lshl_or_b32 v{56+2*i}, v{44+i}, 12, v{48+i}')
    A(f's_movk_i32 s56, {4*C_ARRB}'); A(f's_movk_i32 s59, {4*C_EM}'); A('s_mov_b32 s57, 6'); A('s_mov_b32 s58, 8')
    A('s_branch k3_tail')
    A('k3_help:')
    cnt_init(A, 8)
    A('v_and_b32 v8, 3, v0'); A('v_bfe_u32 v9, v0, 2, 2'); A('v_bfe_u32 v10, v0, 4, 2')
    A('v_lshlrev_b32 v8, 3, v8'); A('v_lshl_or_b32 v8, v9, 6, v8'); A('v_lshl_or_b32 v8, v10, 1, v8')
    A('v_lshlrev_b32 v9, 3, v52')
    A('s_lshr_b32 s57, s2, 3')
    A('s_memrealtime s[58:59]')
    A('s_waitcnt lgkmcnt(0)')
    A('s_mov_b32 s36, s18'); A('s_mov_b32 s37, s19'); A('s_movk_i32 s38, 256')
    A('s_cmp_gt_u32 s2, 7'); A('s_cbranch_scc1 k3_h1')
    A('s_or_b32 s58, s58, 1')
    A('v_mov_b32 v4, s58'); A('v_mov_b32 v5, s59')
    A('s_mov_b64 exec, 1')
    A('buffer_atomic_cmpswap_x2 v[4:7], off, s[36:39], 0 sc1')
    A('s_mov_b64 exec, -1')
    A('k3_h1:')
    A('s_mov_b32 s44, s12'); A('s_mov_b32 s45, s13'); A(f's_mov_b32 s46, {260*256}')
    A('s_mov_b32 s40, s14'); A('s_mov_b32 s41, s15'); A(f's_mov_b32 s42, {256*256}')
    A('s_mov_b32 s56, 65536')
    A('s_barrier')
    for d in range(4):
        A(f'buffer_load_ushort v{16+d}, v8, s[44:47], s56 offen offset:{256*d}')
        A(f'buffer_load_ushort v{20+d}, v8, s[44:47], s56 offen offset:{256*d+32}')
    A('s_lshl_b32 s56, s57, 10'); A('s_add_u32 s56, s56, 32768'); A('s_lshl_b32 s57, s57, 11')
    A('s_mov_b64 exec, 0xff')
    A('buffer_load_dword v24, v9, s[44:47], s56 offen')
    A('s_mov_b64 exec, 0xffff')
    A('buffer_load_dword v25, v9, s[40:43], s57 offen')
    A('s_mov_b64 exec, -1')
    A('s_getpc_b64 s[40:41]')
    A('k3_pc:')
    A('s_mov_b32 s42, code_end-k3_pc')
    A('s_movk_i32 s56, 0x2000')
    A('buffer_load_dword v26, v9, s[40:43], 0 offen')
    A('buffer_load_dword v27, v9, s[40:43], s56 offen')
    A('s_barrier')
    A('s_barrier')
    A(f'buffer_load_dwordx2 v[14:15], off, s[36:39], 0 {SC}')
    A(f's_mov_b32 s56, {NLOG2E}')
    A(f'v_add_u32 v53, {W3S}, v52')
    A('s_waitcnt vmcnt(5)')
    for d in range(8):
        A(f'v_lshlrev_b32 v{16+d}, 16, v{16+d}')
        A(f'v_mul_f32 v{16+d}, s56, v{16+d}')
    for d in range(4): A(f'v_cvt_pk_bf16_f32 v{28+(d^2)}, v{16+2*d}, v{17+2*d}')
    A('ds_write_b128 v53, v[28:31]')
    for d in range(4): A(f'v_max_f32 v{16+d}, |v{16+d}|, |v{20+d}|')
    for sh in DPPS:
        for d in range(4): A(f'v_max_u32_dpp v{16+d}, v{16+d}, v{16+d} {sh}')
    A('v_add_f32 v16, v16, v17'); A('v_add_f32 v18, v18, v19'); A('v_add_f32 v16, v16, v18')
    A(f'v_mul_f32 v13, {f32hex(1.01)}, v16')
    A(f's_movk_i32 s56, {4*C_ARRX}'); A(f's_movk_i32 s59, {4*C_SW}'); A('s_mov_b32 s57, -1')
    A('s_branch k3_tail')
    A('k3_gemm:')
    A('v_and_b32 v11, 0xf0, v0'); A('v_xor_b32 v11, v11, v2')
    A(f's_mul_i32 s56, s23, {BS*256}'); A('s_add_u32 s57, s56, 8192')
    A('s_lshl_b32 s58, s48, 10'); A(f's_add_u32 m0, s58, {XT}')
    A(f's_movk_i32 s59, {BS*16-512}'); A('v_cmp_gt_u32 vcc, s59, v0')
    A(f's_mov_b32 s38, {N*256}')
    A('v_bfe_u32 v10, v0, 2, 4'); A('v_and_b32 v8, 0x30, v2'); A('v_and_b32 v9, 0x20, v0'); A('v_xor_b32 v8, v8, v9')
    A('v_lshl_or_b32 v10, v10, 8, v8')
    A('s_waitcnt lgkmcnt(0)')
    if not opt.get('cap'): stamp(A, opt, 1)
    A('s_mov_b32 s36, s4'); A('s_mov_b32 s37, s5')
    A('buffer_load_dwordx4 v11, s[36:39], s56 offen lds')
    A(f's_add_u32 m0, s58, {XT+8192}')
    A('s_mov_b64 exec, vcc')
    A('buffer_load_dwordx4 v11, s[36:39], s57 offen lds')
    A('s_mov_b64 exec, -1')
    A('s_mov_b32 s44, s12'); A('s_mov_b32 s45, s13'); A(f's_mov_b32 s46, {260*256}')
    A('s_and_b32 s60, s48, 3'); A('s_lshl_b32 s60, s60, 6')
    A('s_lshr_b32 s57, s48, 2'); A('s_lshl_b32 s57, s57, 15'); A('s_add_u32 s57, s57, s60')
    A('s_lshl_b32 s58, s48, 13'); A(f's_add_u32 s58, s58, {QT}'); A('s_mov_b32 m0, s58')
    A('s_barrier')
    def dma_w():
        for i in range(8):
            A('buffer_load_dwordx4 v10, s[44:47], s57 offen lds')
            if i < 7: A('s_add_u32 m0, m0, 1024'); A('s_add_u32 s57, s57, 4096')
    A('s_cmp_gt_u32 s48, 3'); A('s_cbranch_scc1 k3_g1')
    dma_w()
    A('k3_g1:')
    A('v_and_b32 v13, 15, v0'); A('v_bfe_u32 v12, v0, 4, 2')
    A('v_xor_b32 v4, v12, v13'); A('v_lshlrev_b32 v4, 4, v4'); A('v_lshl_add_u32 v4, v13, 8, v4')
    A(f'v_add_u32 v4, {XT}, v4')
    for s in range(1, 4): A(f'v_xor_b32 v{4+s}, {64*s}, v4')
    A('v_and_b32 v8, 3, v0'); A('v_lshlrev_b32 v8, 3, v8'); A('v_and_b32 v9, 16, v0'); A('v_lshl_or_b32 v8, v9, 1, v8')
    A('v_and_b32 v9, 12, v0'); A('v_lshl_or_b32 v8, v9, 4, v8'); A('v_lshl_or_b32 v8, v12, 9, v8')
    A('v_xor_b32 v9, 32, v8'); A('v_add_u32 v8, s58, v8'); A('v_add_u32 v9, s58, v9')
    A('s_cmp_gt_u32 s48, 3'); A('s_cbranch_scc1 k3_g2')
    A('v_lshlrev_b32 v12, 4, v12'); A('v_lshl_add_u32 v12, v13, 8, v12')
    A('s_waitcnt vmcnt(8)')
    stamp(A, opt, 2)
    A('s_barrier')
    A('s_branch k3_g3')
    A('k3_g2:')
    A('v_bfe_i32 v11, v13, 0, 3'); A('v_xor_b32 v12, v12, v11'); A('v_lshlrev_b32 v12, 4, v12'); A('v_xor_b32 v12, s60, v12')
    A('v_and_b32 v12, 0xf0, v12'); A('v_lshl_add_u32 v12, v13, 8, v12')
    A('s_waitcnt vmcnt(0)')
    A('s_barrier')
    dma_w()
    A('k3_g3:')
    stamp(A, opt, 3)
    for rt in range(4):
        for s in range(4): A(f'ds_read_b128 {r(64+16*rt+4*s,4)}, v{4+s} offset:{4096*rt}')
    srd_st(A, 40, WS_P, PROWS * 256)
    A('s_add_u32 s56, s56, s60')
    A(f's_mov_b32 s60, {NLOG2E}'); A('s_mov_b32 s61, s60')
    A('s_barrier')
    stamp(A, opt, 4)
    nonce_load(A)
    for s in range(4):
        A(f's_waitcnt vmcnt({7-2*s})')
        for t in range(2):
            for u in range(2):
                A(f'ds_read_b64_tr_b16 {r(32+8*s+4*t+2*u,2)}, v{8+t} offset:{2048*s+256*u}')
    ACC = [16, 24, 64, 72]
    def mf(rt, t, s):
        a = ACC[rt] + 4 * t
        return f'v_mfma_f32_16x16x32_bf16 {r(a,4)}, {r(32+8*s+4*t,4)}, {r(64+16*rt+4*s,4)}, ' + ('0' if s == 0 else r(a, 4))
    for s in range(4):
        A(f's_waitcnt lgkmcnt({12-4*s})')
        for rt in range(2):
            for t in range(2): A(mf(rt, t, s))
    def post(p):
        o = []
        for rt in (2 * p, 2 * p + 1):
            o += pk('v_pk_mul_f32', ACC[rt], ACC[rt], 's[60:61]')
        for rt in (2 * p, 2 * p + 1):
            o += [f'v_cvt_pk_bf16_f32 v{80+4*rt+j}, v{ACC[rt]+2*j}, v{ACC[rt]+2*j+1}' for j in range(4)]
        return o
    pa = post(0)
    ms = [mf(rt, t, s) for s in range(4) for rt in (2, 3) for t in range(2)]
    for i, m in enumerate(ms):
        A(m)
        if i >= 4:
            for x in pa[(i - 4) * 4 // 3:(i - 3) * 4 // 3]: A(x)
    A('v_and_b32 v10, 0x3f0, v2'); A('v_add_u32 v10, s58, v10')
    A('s_cmp_gt_u32 s48, 3'); A('s_cbranch_scc1 k3_gq')
    for rt in range(4):
        if rt == 2:
            for x in post(1): A(x)
        if rt == 3: A('s_mov_b32 exec_lo, 0x10001'); A('s_mov_b32 exec_hi, 0x10001')
        A(f'buffer_store_dwordx4 {r(80+4*rt,4)}, v12, s[40:43], s56 offen {SC}')
        if rt < 3: A('s_add_u32 s56, s56, 4096')
    A(f's_movk_i32 s56, {4*C_ARRP}'); A(f's_movk_i32 s59, {4*C_PM}'); A('s_mov_b32 s57, 3'); A('s_mov_b32 s58, 0')
    A('s_branch k3_g4')
    A('k3_gq:')
    for rt in range(4):
        if rt == 2:
            for x in post(1)[:8]: A(x)
        if rt == 3: A('s_mov_b32 exec_lo, 0x10001'); A('s_mov_b32 exec_hi, 0x10001')
        for t in range(2): A(f'ds_write_b128 v12, {r(ACC[rt]+4*t,4)} offset:{4096*rt+QH*t}')
    A(f's_movk_i32 s56, {4*C_ARRX}'); A(f's_movk_i32 s59, {4*C_Q}'); A('s_mov_b32 s57, -1')
    A('k3_g4:')
    stamp(A, opt, 5)
    for j in range(4): A(f'v_max3_f32 v16, |v16|, |v{72+2*j}|, |v{73+2*j}|')
    A('s_mov_b64 exec, -1')
    A('v_max3_f32 v13, |v16|, |v17|, |v18|')
    for j in range(6): A(f'v_max3_f32 v13, v13, |v{19+2*j}|, |v{20+2*j}|')
    A('v_max3_f32 v13, v13, |v31|, |v64|')
    for j in range(3): A(f'v_max3_f32 v13, v13, |v{65+2*j}|, |v{66+2*j}|')
    A('v_max_f32 v13, v13, |v71|')
    A('v_lshrrev_b32 v13, 16, v13'); A('v_add_u32 v13, 1, v13')
    A('s_cmp_eq_u32 s48, 0')
    A(f's_cselect_b32 s60, {DUMMYKEY}, 0'); A(f's_cselect_b32 s61, {DUMMYADDR}, 0')
    A('v_mov_b32 v4, s60'); A('v_mov_b32 v5, s61'); A('v_mov_b32 v7, s61')
    A(f's_cselect_b32 s60, s60, {PADIDX}'); A('v_mov_b32 v6, s60')
    for i in range(8): A(f'ds_write_b128 v10, v[4:7] offset:{1024*i}')
    A('k3_tail:')
    for sh in DPPS: A(f'v_max_u32_dpp v13, v13, v13 {sh}')
    A('v_mov_b32 v40, s56'); A('v_mov_b32 v41, 1'); A('v_mov_b32 v42, s59')
    A('s_mov_b32 exec_lo, 0'); A('s_mov_b32 exec_hi, 0x80000000')
    A(f'ds_max_u32 v42, v13 offset:{CNT}')
    srd_st(A, 32, WS_TAB, TAB_BYTES)
    A('s_waitcnt vmcnt(0)')
    stamp(A, opt, 6)
    A(f'ds_add_rtn_u32 v43, v40, v41 offset:{CNT}')
    A(f'ds_read_b32 v44, v42 offset:{CNT}')
    A('s_mov_b64 exec, -1')
    A('v_readfirstlane_b32 s54, v14'); A('v_readfirstlane_b32 s55, v15')
    A('s_cmp_eq_u32 s54, 0'); A('s_cbranch_scc1 k3_nofb')
    A('k3_have:')
    A('s_lshr_b64 s[60:61], s[54:55], 5'); A('s_lshl_b32 s59, s54, 27'); A('s_and_b32 s55, s55, 31')
    for i in range(4): A(f'v_or_b32 v{56+2*i}, s59, v{56+2*i}'); A(f'v_mov_b32 v{57+2*i}, s60')
    A('s_waitcnt lgkmcnt(0)')
    A('v_readlane_b32 s56, v43, 63')
    A('s_cmp_lg_u32 s56, s57'); A('s_cbranch_scc1 k3_nopub')
    A('s_cmp_eq_u32 s58, 0'); A('s_cbranch_scc1 k3_pubf')
    A('s_lshl_b32 s56, s23, 11')
    A(f'buffer_store_dwordx4 v[56:59], v52, s[32:35], s56 offen {SC}')
    A(f'buffer_store_dwordx4 v[60:63], v52, s[32:35], s56 offen offset:1024 {SC}')
    A('k3_pubf:')
    A('v_or_b32 v44, s59, v44'); A('v_mov_b32 v45, s60')
    A('s_lshl_b32 s56, s23, 4'); A('s_add_u32 s56, s56, s58'); A(f's_add_u32 s56, s56, {PF_OFF}')
    A('s_mov_b32 exec_lo, 0'); A('s_mov_b32 exec_hi, 0x80000000')
    A(f'buffer_store_dwordx2 v[44:45], off, s[32:35], s56 {SC}')
    A('s_mov_b64 exec, -1')
    A('k3_nopub:')
    A('s_cmp_eq_u32 s22, 1'); A('s_cbranch_scc1 k3_redo')
    A(f's_mov_b32 s34, {TAB_BYTES}')
    A('v_lshrrev_b32 v103, 2, v0'); A('v_lshlrev_b32 v102, 11, v103')
    A('s_lshr_b32 s52, s3, 2'); A('s_lshl_b32 s52, s52, 4'); A('s_and_b32 s56, s3, 1'); A('s_lshl_b32 s56, s56, 3'); A('s_add_u32 s52, s52, s56')
    A('s_and_b32 s56, s3, 2'); A('s_lshl_b32 s56, s56, 9'); A('s_add_u32 s52, s52, s56')
    A(f'buffer_load_dwordx2 v[126:127], v102, s[32:35], s52 offen {SC}')
    A.srd(28, 20, NB * CHB, off=WS_REC)
    A.srd(24, 20, PROWS, off=WS_P, stride=256)
    A('s_mov_b32 s36, s14'); A('s_mov_b32 s37, s15'); A(f's_mov_b32 s38, {256*256}')
    A('s_mov_b32 s49, 0'); A('s_mov_b32 s50, 0')
    A('s_mov_b32 s62, 0x22221111'); A('s_mov_b32 s63, 0x88884444')
    for k in range(NK): A(f's_mov_b64 {RMASK[k]}, -1')
    A('k3_round:')
    A('v_lshlrev_b32 v2, 4, v0')
    A(f's_movk_i32 s56, {BS*16}'); A('v_cmp_gt_u32 s[60:61], s56, v0')
    A('v_and_b32 v104, 3, v0'); A('v_mul_u32_u24 v104, 3, v104'); A('v_add_u32 v104, s49, v104')
    A(f's_mov_b32 s56, {CHB}'); A('v_mul_u32_u24 v103, s56, v103'); A('v_lshl_add_u32 v103, v104, 2, v103')
    A('v_and_b32 v7, 0xf0, v2')
    for s in range(1, 4): A(f'v_mov_b32 v{WP+1+2*s}, v7')
    A('s_lshl_b32 s56, s48, 8'); A(f's_add_u32 s56, s56, {PF_OFF}'); A('v_add_u32 v105, s56, v7')
    A('v_and_b32 v106, 0x30, v0'); A('v_lshlrev_b32 v106, 1, v106'); A('v_xor_b32 v106, v106, v2')
    A('v_lshlrev_b32 v125, 1, v0'); A('v_and_b32 v125, 0x80, v125'); A('v_xor_b32 v125, v125, v106')
    A('v_and_b32 v107, 0x80, v0'); A('v_xor_b32 v106, v106, v107')
    A('v_lshrrev_b32 v107, 4, v0'); A('v_bfe_i32 v120, v107, 0, 3'); A('v_lshlrev_b32 v120, 4, v120'); A('v_xor_b32 v120, v120, v7')
    A('v_and_b32 v120, 0xf0, v120'); A('v_lshl_add_u32 v120, v107, 8, v120')
    A('v_and_b32 v121, 0xf0, v0'); A('v_xor_b32 v121, v121, v2')
    A('v_and_b32 v122, 0x1c, v0'); A('v_lshlrev_b32 v122, 3, v122'); A('v_and_b32 v107, 3, v0'); A('v_lshl_or_b32 v122, v107, 3, v122')
    A('s_and_b32 s56, s48, 3'); A('s_lshl_b32 s56, s56, 6'); A('v_xor_b32 v122, s56, v122')
    A('v_and_b32 v107, 0x3c, v0'); A('v_lshl_or_b32 v122, v107, 6, v122'); A(f'v_add_u32 v122, {WU}, v122')
    A('s_lshr_b32 s57, s48, 2'); A('s_lshl_b32 s57, s57, 12')
    A('v_lshl_add_u32 v124, v7, 4, s57')
    A('v_and_b32 v123, 0x30, v0'); A('v_xor_b32 v123, v123, v7'); A('v_add_u32 v123, v123, v124')
    A('v_and_b32 v107, 16, v0'); A('v_lshl_add_u32 v124, v107, 1, v124')
    A('v_bfe_u32 v107, v0, 5, 1'); A('v_lshl_add_u32 v124, v107, 4, v124'); A('v_add_u32 v124, s56, v124')
    A('v_and_b32 v107, 3, v0'); A('v_lshlrev_b32 v107, 4, v107')
    A(f'v_mov_b32 v{AR+2}, 0x3f80'); A(f'v_mov_b32 v{AR+3}, 0')
    A(f'v_mov_b64 {r(AR,2)}, 0')
    A('s_mov_b32 exec_lo, 0x00f0000f'); A('s_mov_b32 exec_hi, 0xf0000f00')
    A(f'v_lshlrev_b64 {r(AR,2)}, v107, {r(AR+2,2)}')
    A('s_mov_b64 exec, -1')
    for k in range(1, 5):
        A(f'v_mov_b64 {r(AR+4*k,2)}, {r(AR,2)}'); A(f'v_mov_b64 {r(AR+4*k-2,2)}, 0')
    A('v_and_b32 v34, 0x3f0, v2'); A(f'v_add_u32 v34, {W3S}, v34')
    A('s_lshl_b32 s56, s48, 5'); A(f's_add_u32 s56, s56, {QT}')
    A(f'v_and_b32 v{TPE}, 0xc, v0'); A(f'v_lshl_add_u32 v{TPE}, v{TPE}, 1, s56')
    A(f'v_bfe_u32 v{TPI}, v0, 4, 2'); A(f'v_lshl_add_u32 v{TPI}, v{TPI}, 3, s56')
    A('s_lshl_b32 s58, s48, 10'); A(f's_add_u32 m0, s58, {WU}')
    A(f's_movk_i32 s53, {TMO}')
    A('v_mov_b32 v107, 0')
    A('k3_poll:')
    A('s_waitcnt vmcnt(0)')
    A('v_lshrrev_b64 v[100:101], 27, v[126:127]')
    A('v_cmp_ne_u64 vcc, s[54:55], v[100:101]')
    A('s_and_b64 exec, exec, vcc')
    A('s_cbranch_scc1 k3_poll2')
    A('k3_polled:')
    A('s_mov_b64 exec, -1')
    stamp(A, opt, 7)
    A('v_and_b32 v100, 0x3fff, v126'); A('v_bfe_u32 v101, v126, 14, 13')
    A('v_lshl_add_u32 v102, v100, 2, v103'); A('v_sub_u32 v101, v101, v104')
    for k in range(NK):
        A(f'v_cmp_lt_i32 vcc, {12*k}, v101')
        A(f's_and_b64 {RMASK[k]}, {RMASK[k]}, vcc')
        A(f's_mov_b64 exec, {RMASK[k]}')
        A(f'buffer_load_dwordx3 {r(RECB[k],3)}, v102, s[28:31], 0 offen offset:{48*k} {SC}')
        A('s_mov_b64 exec, -1')
    A(f'v_cmp_lt_i32 vcc, {12*NK}, v101')
    A('s_mov_b64 exec, 0xffff')
    A(f'buffer_load_dwordx4 v[108:111], v105, s[32:35], 0 offen {SC}')
    A('s_mov_b64 exec, -1')
    A('s_cmp_lg_u64 vcc, 0'); A('s_cselect_b32 s51, 1, 0')
    A('v_mov_b32 v100, 16'); A(f'v_mov_b32 v101, {ENT+NSTR}'); A(f's_movk_i32 s57, {NSTR//4}')
    A('s_movk_i32 s56, 0x4000')
    A('s_waitcnt lgkmcnt(0)')
    A('s_barrier')
    A('buffer_load_dwordx4 v106, s[36:39], 0 offen lds')
    A(f's_add_u32 m0, s58, {WU+16384}')
    for k in range(3): A(f'ds_read_b128 {r(RING+6+8*k,4)}, v34')
    A('buffer_load_dwordx4 v106, s[36:39], s56 offen lds')
    A(f'ds_read_b64 {r(RING+30,2)}, v34'); A(f'ds_read_b64 {r(RING,2)}, v34 offset:8')
    A('s_waitcnt vmcnt(3)')
    stamp(A, opt, 8)
    for k in range(NK):
        b = RECB[k]
        A(f's_mov_b64 exec, {RMASK[k]}')
        if k > 1: A(f's_cbranch_execz k3_cnt{k}')
        A(f'v_lshlrev_b32_sdwa v{CADDR[k]}, 2, v{b+2} {SD} src0_sel:DWORD src1_sel:BYTE_3')
        A(f'ds_add_rtn_u32 v{b+3}, v{CADDR[k]}, v100 offset:{CNT}')
        A(f'v_mad_u32_u24 v{LIM[k]}, v{CADDR[k]}, s57, v101')
        if k > 1: A(f'k3_cnt{k}:')
    def pf_check():
        A('v_lshrrev_b64 v[102:103], 27, v[108:109]'); A('v_cmp_ne_u64 s[56:57], s[54:55], v[102:103]')
        A('v_lshrrev_b64 v[102:103], 27, v[110:111]'); A('v_cmp_ne_u64 vcc, s[54:55], v[102:103]')
        A('s_or_b64 vcc, vcc, s[56:57]')
    A('s_mov_b64 exec, 0xffff')
    A('s_waitcnt vmcnt(2)')
    pf_check()
    A('s_mov_b64 exec, vcc')
    A(f'buffer_load_dwordx4 v[108:111], v105, s[32:35], 0 offen {SC}')
    A('s_mov_b32 s56, 0')
    A('s_waitcnt lgkmcnt(0)')
    for k in range(NK):
        b = RECB[k]; f = FM[k]
        A(f's_mov_b64 exec, {RMASK[k]}')
        A(f's_mov_b64 s[{f}:{f+1}], 0')
        A(f's_cbranch_execz k3_qa{k}')
        A(f'v_cmp_lt_u32 vcc, v{b+3}, v{LIM[k]}')
        A(f'v_and_b32 v{CADDR[k]}, 63, v{b+3}')
        A(f's_andn2_b64 {RMASK[k]}, exec, vcc')
        A('s_mov_b64 exec, vcc')
        A(f'ds_write_b96 v{b+3}, {r(b,3)}')
        A(f'v_cmp_eq_u32 s[{f}:{f+1}], 0, v{CADDR[k]}')
        A(f'v_mov_b32 v{CADDR[k]}, s56')
        A(f'v_mbcnt_lo_u32_b32 v{CADDR[k]}, s{f}, v{CADDR[k]}')
        A(f'v_mbcnt_hi_u32_b32 v{CADDR[k]}, s{f+1}, v{CADDR[k]}')
        A(f's_bcnt1_i32_b64 s57, s[{f}:{f+1}]'); A('s_add_u32 s56, s56, s57')
        A(f'k3_qa{k}:')
    A('s_lshl_b32 s56, s56, 3')
    A('s_mov_b64 exec, 1')
    A('v_mov_b32 v101, s56')
    A(f'ds_add_rtn_u32 v101, v107, v101 offset:{CNT+4*C_QT}')
    A(f's_or_b64 vcc, {RMASK[0]}, {RMASK[1]}')
    for k in range(2, NK): A(f's_or_b64 vcc, vcc, {RMASK[k]}')
    A('s_cbranch_scc1 k3_pend')
    for k in range(NK): A(f's_mov_b64 {RMASK[k]}, -1')
    A(f's_add_u32 s49, s49, {12*NK}')
    A('s_cmp_eq_u32 s51, 0'); A('s_cbranch_scc1 k3_noflag')
    A('k3_pend:')
    A(f'ds_write_b32 v107, v{TPI} offset:{CNT+4*C_MORE}')
    A('k3_noflag:')
    A('s_waitcnt lgkmcnt(0)')
    A('v_readfirstlane_b32 s56, v101')
    for k in range(NK):
        b = RECB[k]; f = FM[k]
        A(f's_mov_b64 exec, s[{f}:{f+1}]')
        if k > 1: A(f's_cbranch_execz k3_qw{k}')
        A(f'v_lshl_add_u32 v{CADDR[k]}, v{CADDR[k]}, 3, s56')
        A(f'ds_write_b64 v{CADDR[k]}, {r(b+2,2)}')
        if k > 1: A(f'k3_qw{k}:')
    A('k3_pf:')
    A('s_mov_b64 exec, 0xffff')
    A('s_waitcnt vmcnt(0)')
    pf_check()
    A('s_cbranch_scc1 k3_pf2')
    A('k3_pfd:')
    A(f'ds_max_u32 v107, v108 offset:{CNT+4*C_P}')
    A(f'ds_max_u32 v107, v110 offset:{CNT+4*C_E}')
    A('s_mov_b64 exec, -1')
    A('s_waitcnt lgkmcnt(0)')
    A('s_barrier')
    stamp(A, opt, 9)
    A(f'ds_read_b32 v{VLI}, v{TPI} offset:4')
    A(f'ds_read_b128 v[112:115], v107 offset:{CNT+4*C_P}')
    A(f'ds_read_b32 v{AA}, v{TPI} offset:{512+4}')
    A(f'ds_read_b32 v{VLE}, v{TPE} offset:4')
    A(f'ds_read_u16 v{QA}, v{TPI} offset:2')
    A(f'ds_read_b128 v[116:119], v107 offset:{CNT+4*C_CLAIM}')
    A('s_waitcnt lgkmcnt(5)')
    for s in range(4): A(f'ds_read_u16 v{WP+2*s}, v{VLI} offset:{16*s+8}')
    A('s_waitcnt lgkmcnt(4)')
    A('v_readfirstlane_b32 s56, v113'); A('v_readfirstlane_b32 s53, v115'); A('v_readfirstlane_b32 s51, v114')
    A(f'v_mov_b32 v{VLI}, v{AA}')
    A(f'v_xor_b32 v{QA}, v{QA}, v{WP+1}')
    A('s_cmp_lg_u32 s56, 0'); A('s_cbranch_scc1 k3_steal')
    A('s_waitcnt lgkmcnt(0)')
    for s in range(4): gather(A, s)
    A(f'ds_read_b32 v{VLI}, v{TPI} offset:{2*512+4}')
    A(f'ds_read_b32 v{VLE}, v{TPE} offset:{512+4}')
    stamp(A, opt, 10)
    A('v_and_b32 v108, 0xc00, v122') if False else None
    A(f'v_subrev_u32 v109, {QT}, v{TPI}'); A('v_and_b32 v109, 0x18, v109')
    A('v_lshl_add_u32 v108, v109, 7, v122'); A('v_xor_b32 v109, 32, v108')
    for s in range(4):
        for t in range(2):
            for u in range(2):
                A(f'ds_read_b64_tr_b16 {r(64+8*s+4*t+2*u,2)}, v{108+t} offset:{8192*s+1024*u}')
    A(f'v_add_u32 v96, {XT}, v123')
    for s in (3, 2, 1): A(f'v_xor_b32 v{96+4*s}, {64*s}, v96')
    for s in range(4): A(f'ds_read_b128 {r(96+4*s,4)}, v{96+4*s}')
    A(f's_add_u32 s53, s53, {31 - QT}'); A('s_lshr_b32 s53, s53, 5')
    A('s_sub_u32 s53, s53, s48'); A('s_add_u32 s53, s53, 15'); A('s_lshr_b32 s53, s53, 4')
    A('v_lshlrev_b32 v112, 16, v112'); A('v_lshlrev_b32 v118, 16, v118'); A('v_lshlrev_b32 v119, 16, v119')
    A('v_add_f32 v112, v112, v118'); A('v_fma_f32 v112, v117, v119, v112')
    A('v_readfirstlane_b32 s56, v112')
    A('s_or_b32 s50, s50, s51')
    A(f's_cmp_gt_u32 s56, {f32hex(30.0)}'); A('s_cselect_b32 s50, 1, s50')
    A('s_lshr_b32 s56, s56, 23')
    A('s_cmp_lt_u32 s56, 32'); A('s_cselect_b32 s50, 1, s50')
    A('s_lshl_b32 s56, s56, 23')
    A(f's_add_u32 s44, s56, {(5 << 23) | 0x400000}'); A('s_mov_b32 s45, s44')
    A(f's_sub_u32 s46, s56, {18 << 23}'); A('s_mov_b32 s47, s46')
    A('s_sub_u32 s42, 0, s44'); A('s_subb_u32 s43, 0, s44')
    A(f's_mov_b32 s40, {NLOG2E}'); A('s_mov_b32 s41, s40')
    A(f's_add_u32 m0, s58, {WU}'); A('s_mov_b32 s56, 32768'); A('s_mov_b32 s57, 49152')
    for s in range(4):
        A(f's_waitcnt lgkmcnt({3-s})')
        for t in range(2):
            a = UU + 4 * t
            A(f'v_mfma_f32_16x16x32_bf16 {r(a,4)}, {r(64+8*s+4*t,4)}, {r(96+4*s,4)}, ' + ('0' if s == 0 else r(a, 4)))
    A('s_barrier')
    stamp(A, opt, 11)
    A('v_lshrrev_b32 v74, 8, v120'); A(f'v_mul_u32_u24 v79, {NSTR}, v74'); A('v_lshlrev_b32 v74, 2, v74')
    A(f'ds_read_b32 v74, v74 offset:{CNT}')
    A(f'ds_read_b128 {r(ZC,4)}, v120'); A(f'ds_read_b128 {r(ZC+4,4)}, v120 offset:{QH}')
    A(f'ds_read_b128 {r(QQ,4)}, v{QA}')
    A(f'ds_read_b128 {r(QQ+4,4)}, v{QA} offset:{QH}')
    A('buffer_load_dwordx4 v125, s[36:39], s56 offen lds')
    A(f's_add_u32 m0, s58, {WU+16384}')
    for x in pk('v_pk_mul_f32', UU, UU, 's[40:41]'): A(x)
    A('buffer_load_dwordx4 v125, s[36:39], s57 offen lds')
    A('s_mov_b64 exec, s[60:61]')
    A('s_cbranch_execz k3_pc_done')
    A('s_waitcnt lgkmcnt(2)')
    A('v_sub_u32 v74, v74, v79'); A(f'v_subrev_u32 v74, {ENT}, v74'); A(f'v_min_u32 v74, {NSTR}, v74')
    A('v_add_u32 v78, 48, v74'); A('v_lshrrev_b32 v78, 6, v78')
    A('v_lshlrev_b32 v76, 6, v78'); A('v_sub_u32 v76, v74, v76')
    A('v_cvt_f32_i32 v76, v76'); A(f'v_mul_f32 v76, {f32hex(1/16)}, v76'); A('v_mov_b32 v77, v76')
    for j in range(8): A(f'v_exp_f32 v{TT+j}, v{ZC+j}')
    for x in pk('v_pk_mul_f32', ZC, ZC, 'v[76:77]'): A(x)
    for x in pk('v_pk_add_f32', TT, TT, '1.0', mod='op_sel_hi:[1,0]'): A(x)
    for j in range(8): A(f'v_rcp_f32 v{TT+j}, v{TT+j}')
    A('s_cmp_lg_u32 s50, 0'); A('s_cbranch_scc1 k3_pc_x')
    A('v_add_u32 v78, 1, v78')
    A('v_mad_u64_u32 v[76:77], vcc, v78, s42, 0')
    A('v_mul_lo_u32 v78, v78, s43'); A('v_add_u32 v77, v77, v78')
    for x in pk('v_pk_fma_f32', ZC, ZC, TT, 's[44:45]'): A(x)
    for j in range(4): A(f'v_lshl_add_u64 {r(ZC+2*j,2)}, {r(ZC+2*j,2)}, 0, v[76:77]')
    agg_add(A, 120, ZC, False)
    A('k3_pc_done:')
    A('s_mov_b64 exec, -1')
    A('s_cmp_eq_u32 s53, 0'); A('s_cbranch_scc1 k3_loop_done')
    A('s_waitcnt vmcnt(5) lgkmcnt(0)')
    stamp(A, opt, 12)
    if opt.get('clk'): A('s_memtime s[68:69]'); A('s_mov_b32 s72, s53')
    for x in mfma_pair(0, ZN): A(x)
    A('s_cmp_lg_u32 s50, 0'); A('s_cbranch_scc1 k3_exact')
    A('s_setprio 3')
    def loop(ex):
        nm = 'x' if ex else 'f'
        A('s_cmp_eq_u32 s53, 1'); A(f's_cbranch_scc1 k3_last_{nm}')
        A(f'k3_loop_{nm}:')
        body(A, True, ex)
        A('s_sub_u32 s53, s53, 1')
        if not ex:
            A('s_cmp_gt_u32 s53, 3'); A(f's_cbranch_scc1 k3_loop_{nm}')
            A('s_setprio 2')
            A('s_cmp_gt_u32 s53, 2'); A(f's_cbranch_scc1 k3_loop_{nm}')
            A('s_setprio 1')
        A('s_cmp_gt_u32 s53, 1'); A(f's_cbranch_scc1 k3_loop_{nm}')
        A(f'k3_last_{nm}:')
        if not ex: A('s_setprio 0')
        body(A, False, ex)
    loop(False)
    A('k3_epi:')
    stamp(A, opt, 13)
    if opt.get('clk'): A('s_memtime s[70:71]')
    A('v_xor_b32 v1, 32, v122')
    for s in range(1, 4): A(f'v_xor_b32 v{1+s}, {64*s}, v123')
    A.srd(28, 16, N * 256)
    A(f's_mul_i32 s56, s3, {BS*256}')
    A('s_cmp_gt_u32 s48, 11'); A('s_cselect_b32 s57, 0x10001, -1')
    A('s_waitcnt vmcnt(0) lgkmcnt(0)')
    A('s_barrier')
    stamp(A, opt, 14)
    A(f'ds_read_b128 v[64:67], v120 offset:{AG0}'); A(f'ds_read_b128 v[68:71], v120 offset:{AG1}')
    for s in range(4):
        for t in range(2):
            for u in range(2):
                A(f'ds_read_b64_tr_b16 {r(32+8*s+4*t+2*u,2)}, v{122 if t == 0 else 1} offset:{8192*s+4096*u}')
    A('s_mov_b64 exec, s[60:61]')
    A('s_cbranch_execz k3_p1_done')
    A('s_waitcnt lgkmcnt(15)')
    A('s_cmp_lg_u32 s50, 0'); A('s_cbranch_scc1 k3_p1_x')
    for j in range(8): A(f'v_cvt_f32_i32 v{64+j}, v{64+j}')
    for x in pk('v_pk_mul_f32', 64, 64, 's[46:47]'): A(x)
    A('k3_p1_x:')
    for j in range(4): A(f'v_cvt_pk_bf16_f32 v{72+j}, v{64+2*j}, v{65+2*j}')
    A(f'ds_write_b128 v121, v[72:75] offset:{AGB}')
    A('k3_p1_done:')
    A('s_mov_b64 exec, -1')
    A(f's_mov_b32 s46, {NLN2}'); A('s_mov_b32 s47, s46')
    A('s_waitcnt lgkmcnt(0)')
    A('s_barrier')
    for s in range(4): A(f'ds_read_b128 {r(64+4*s,4)}, v{123 if s == 0 else 1+s} offset:{AGB}')
    for s in range(4):
        A(f's_waitcnt lgkmcnt({3-s})')
        for t in range(2):
            a = UU + 4 * t
            A(f'v_mfma_f32_16x16x32_bf16 {r(a,4)}, {r(32+8*s+4*t,4)}, {r(64+4*s,4)}, {r(a,4)}')
    for j in range(8): A(f'v_exp_f32 v{TT+j}, v{UU+j}')
    for x in pk('v_pk_mul_f32', UU, UU, 's[46:47]'): A(x)
    for x in pk('v_pk_add_f32', TT, TT, '1.0', mod='op_sel_hi:[1,0]'): A(x)
    for j in range(8): A(f'v_rcp_f32 v{TT+j}, v{TT+j}')
    for x in pk('v_pk_mul_f32', UU, UU, TT): A(x)
    for j in range(4): A(f'v_cvt_pk_bf16_f32 v{24+j}, v{UU+2*j}, v{UU+2*j+1}')
    A('v_permlane16_swap_b32 v24, v26'); A('v_permlane16_swap_b32 v25, v27')
    A('s_mov_b32 exec_lo, s57'); A('s_mov_b32 exec_hi, s57')
    A(f'buffer_store_dwordx4 v[24:27], v124, s[28:31], s56 offen {opt.get("out_mods","")}')
    if opt.get('stamp'):
        A('s_mov_b64 exec, -1'); tid(A, 0)
    stamp_end(A, opt, 15, 20, WS_STAMP)
    A('k3_end:')
    A('s_endpgm')
    A('k3_poll2:')
    A(f'buffer_load_dwordx2 v[126:127], v102, s[32:35], s52 offen {SC}')
    A('s_sub_u32 s53, s53, 1'); A('s_cbranch_scc0 k3_poll')
    A('s_waitcnt vmcnt(0)')
    A('v_lshrrev_b32 v126, 11, v102'); A('v_add_u32 v126, 1, v126')
    A(f'ds_write_b32 v107, v126 offset:{CNT+4*C_MISS}')
    A('s_waitcnt lgkmcnt(0)')
    A('v_mov_b32 v126, 0')
    A('s_mov_b32 s53, 0')
    A('s_branch k3_polled')
    A('k3_pf2:')
    A('s_mov_b64 exec, vcc')
    A(f'buffer_load_dwordx4 v[108:111], v105, s[32:35], 0 offen {SC}')
    A('s_sub_u32 s53, s53, 1'); A('s_cbranch_scc0 k3_pf')
    A(f'v_subrev_u32 v102, {PF_OFF-16}, v105'); A('v_lshrrev_b32 v102, 4, v102')
    A(f'ds_write_b32 v107, v102 offset:{CNT+4*C_MISS}')
    A('s_waitcnt vmcnt(0)')
    A('s_branch k3_pfd')
    A('k3_nofb:')
    A('s_memrealtime s[54:55]')
    A('v_mov_b64 v[48:49], 0')
    A('s_waitcnt lgkmcnt(0)')
    A('s_or_b32 s54, s54, 1')
    A('v_mov_b32 v46, s54'); A('v_mov_b32 v47, s55')
    A('s_mov_b64 exec, 1')
    A('buffer_atomic_cmpswap_x2 v[46:49], off, s[36:39], 0 sc0 sc1')
    A('s_waitcnt vmcnt(0)')
    A('s_mov_b64 exec, -1')
    A('v_readfirstlane_b32 s60, v46'); A('v_readfirstlane_b32 s61, v47')
    A('s_cmp_lg_u32 s60, 0'); A('s_cselect_b64 s[54:55], s[60:61], s[54:55]')
    A('s_branch k3_have')
    A('k3_steal:')
    A('s_sub_u32 s23, s56, 1')
    A('s_cmp_lg_u32 s48, 0'); A('s_cbranch_scc1 k3_st1')
    A('s_mov_b32 s36, s18'); A('s_mov_b32 s37, s19'); A('s_movk_i32 s38, 256')
    A('s_lshr_b32 s56, s23, 5'); A('s_lshl_b32 s56, s56, 2'); A('s_lshl_b32 s57, 1, s23')
    A('v_mov_b32 v100, s57')
    A('s_mov_b64 exec, 1')
    A('buffer_atomic_or v100, off, s[36:39], s56 offset:32 sc0 sc1')
    A('s_waitcnt vmcnt(0)')
    A('v_and_b32 v100, s57, v100')
    A(f'ds_write_b32 v107, v100 offset:{CNT+4*C_CLAIM}')
    A('s_mov_b64 exec, -1')
    A('k3_st1:')
    A('s_waitcnt vmcnt(0) lgkmcnt(0)')
    A('s_barrier')
    A(f'ds_read_b32 v100, v107 offset:{CNT+4*C_CLAIM}')
    A('s_waitcnt lgkmcnt(0)')
    A('v_readfirstlane_b32 s56, v100')
    A('s_mov_b32 s22, 1')
    A('s_cmp_eq_u32 s56, 0'); A('s_cbranch_scc1 k3_rst')
    A('k3_redo:')
    A('s_mov_b32 s22, 2'); A('s_mov_b32 s23, s3')
    A('k3_rst:')
    if opt.get('cap'): A('s_sub_u32 s66, s66, 1'); A('s_cbranch_scc1 k3_end')
    tid(A, 0)
    A('s_waitcnt vmcnt(0) lgkmcnt(0)')
    A('s_barrier')
    kargs(A)
    A('s_branch k3_go')
    A('k3_pc_x:')
    for x in pk('v_pk_mul_f32', ZC, ZC, TT): A(x)
    agg_add(A, 120, ZC, True)
    A('s_branch k3_pc_done')
    A('k3_exact:')
    loop(True)
    A('k3_loop_done:')
    A('s_cmp_eq_u32 s51, 0'); A('s_cbranch_scc1 k3_epi')
    if opt.get('cap'): A('s_sub_u32 s66, s66, 1'); A('s_cbranch_scc1 k3_end')
    tid(A, 0)
    A('s_waitcnt vmcnt(0) lgkmcnt(0)')
    A('s_barrier')
    A('v_lshlrev_b32 v2, 4, v0'); A(f'v_add_u32 v2, {QT}, v2')
    A('v_mov_b64 v[64:65], 0'); A(f'v_mov_b32 v66, {PADIDX}'); A('v_mov_b32 v67, 0')
    for k in range(1, 4): A(f'ds_write_b128 v2, v[64:67] offset:{16384*k}')
    A('s_cmp_gt_u32 s48, 7'); A('s_cbranch_scc1 k3_r1')
    A('s_waitcnt lgkmcnt(0)')
    A(f'v_mov_b32 v64, {DUMMYKEY}'); A(f'v_mov_b32 v65, {DUMMYADDR}'); A('v_mov_b64 v[66:67], v[64:65]')
    A('k3_r1:')
    A('ds_write_b128 v2, v[64:67]')
    A('s_cmp_lg_u32 s48, 15'); A('s_cbranch_scc1 k3_r2')
    cnt_init(A, 68)
    A('k3_r2:')
    A('v_lshrrev_b32 v103, 2, v0')
    A('s_branch k3_round')
    return LDS_TOTAL, 128
```

```python
import sys
from asmlib import *
from consts3 import *
import k3
opt = {}
for a in sys.argv[2:]:
    k, _, v = a.partition('=')
    opt[k] = v.replace('+', ' ') if v else True
hdr = open('gather_scatter__mpnn_edge_mlp__graph.s.ref').read().split('; Override launch')[0]
A = Asm()
lds, vg = k3.emit(A, opt)
top = [hdr.rstrip(), f'; @launch grid=({NB},1,1) block=(1024,1,1) lds={lds}']
A('code_end:')
body, n = pad_hazards(A.o)
sys.stderr.write(f'nop states inserted: {n}, lines {len(body)}\n')
out = top + ['.amdgcn_target "amdgcn-amd-amdhsa--gfx950"', '.text'] + body + ['.section .rodata,"a"', kdesc('gather_scatter__mpnn_edge_mlp__graph_kernel', vg)]
open(sys.argv[1], 'w').write('\n'.join(out) + '\n')
```

```python
from asmlib import *
from consts3 import *

Q0 = 0; QH = 12800; AG0 = 25600; AG1 = 38400; CNT = 51200
QT = 51456; QTB = 8192
ENT = QT + QTB; CAP = 72; NSTR = CAP * 16; ENTB = 57344
WU = ENT + ENTB; XT = WU + 32768; W3S = XT + BS * 256; LDS_TOTAL = W3S + 1024
STG = WU + 2048
AGB = 0
PADIDX = 0xffff; DUMMYKEY = 49 << 24; DUMMYADDR = ENT + BS * NSTR
assert DUMMYADDR + 64 <= ENT + ENTB and ENT % 64 == 0 and NSTR % 64 == 0 and (BS * CAP // 4 + 4) * 8 <= QTB
assert WU % 256 == 0 and XT % 256 == 0 and LDS_TOTAL <= 163840 and STG + CHP <= XT
C_ARRB, C_ARRP, C_EM, C_PM, C_ARRX = 50, 51, 52, 53, 54
C_CLAIM, C_SW, C_Q, C_E, C_P, C_MISS, C_MORE, C_QT = 56, 57, 58, 59, 60, 61, 62, 63

TPI, VLI, VLE, QA, AA, TPE = 0, 1, 2, 3, 4, 5
WP = 6
AR = 14; RING = 32
ZN, ZB, ZC, DD, TT, QQ, UU = 64, 72, 80, 88, 96, 104, 112
NK = 6
RECB = [64 + 4 * k for k in range(NK)]; CADDR = [88 + k for k in range(NK)]; LIM = [94 + k for k in range(NK)]
RMASK = ['s[4:5]', 's[6:7]', 's[8:9]', 's[10:11]', 's[12:13]', 's[96:97]']
FM = [98, 100, 40, 42, 44, 46]
SD = 'dst_sel:DWORD dst_unused:UNUSED_PAD'
AGO = [AG0, AG0 + 8, AG1, AG1 + 8]
SC = 'sc0 sc1'
W3C = '0x00020000'

def r(b, n): return f'v[{b}:{b+n-1}]'

def mfma_pair(step, z):
    e = AR + 2 + 4 * step; b = RING + 8 * step
    return [f'v_mfma_f32_16x16x32_bf16 {r(z,4)}, {r(e,4)}, {r(b,4)}, {r(QQ,4)}',
            f'v_mfma_f32_16x16x32_bf16 {r(z+4,4)}, {r(e-2,4)}, {r(b+4,4)}, {r(QQ+4,4)}']

def gather(A, step):
    A(f'buffer_load_dwordx4 {r(RING+8*step+2,4)}, {r(WP+2*step,2)}, s[24:27], 0 idxen offen {SC}')
    A('s_mov_b64 exec, s[62:63]')
    A(f'ds_read_b64 {r(AR+2+4*step,2)}, v{VLE} offset:{16*step}')
    A('s_mov_b64 exec, -1')
    A(f'ds_read_u16 v{WP+2*step}, v{VLI} offset:{16*step+8}')

def pk(op, d, a, b, c=None, mod=''):
    o = []
    for j in range(4):
        f = lambda x: x if isinstance(x, str) else r(x + 2 * j, 2)
        o.append(f'{op} {f(d)}, {f(a)}, {f(b)}' + (f', {f(c)}' if c is not None else '') + (' ' + mod if mod else ''))
    return o

def agg_add(A, addr, src, exact):
    if exact:
        for j in range(8): A(f'ds_add_f32 v{addr}, v{src+j} offset:{(AG0 if j < 4 else AG1) + 4*(j&3)}')
    else:
        for j in range(4): A(f'ds_add_u64 v{addr}, {r(src+2*j,2)} offset:{AGO[j]}')

def body(A, nxt, exact):
    Z = [ZN, ZB, ZC, ZB]
    na = 8 if exact else 4
    for s in range(4):
        z = Z[s]
        if s == 0:
            A(f's_waitcnt lgkmcnt({na})')
            if nxt:
                A(f'v_mov_b32 v{AA}, v{QA}')
                A(f'ds_read_u16 v{QA}, v{TPI} offset:{512+2}')
        if nxt: gather(A, s)
        if nxt and s == 3:
            A(f'ds_read_b32 v{VLI}, v{TPI} offset:{3*512+4}')
            A(f'ds_read_b32 v{VLE}, v{TPE} offset:{2*512+4}')
            A(f'v_add_u32 v{TPI}, 0x200, v{TPI}')
            A(f'v_add_u32 v{TPE}, 0x200, v{TPE}')
        ex = [f'v_exp_f32 v{TT+j}, v{z+j}' for j in range(8)]
        if s < 3:
            m = mfma_pair(s + 1, Z[s + 1])
            w = f's_waitcnt vmcnt({3 if nxt else 2 - s})'
            if s == 2 and nxt: w += ' lgkmcnt(6)'
            seq = ex[:2] + [w, m[0]] + ex[2:5] + [m[1]] + ex[5:]
        else:
            seq = ex
        for x in seq: A(x)
        if nxt and s == 2:
            A(f'v_xor_b32 v{QA}, v{QA}, v{WP+1}')
            A(f'ds_read_b128 {r(QQ,4)}, v{QA}')
            A(f'ds_read_b128 {r(QQ+4,4)}, v{QA} offset:{QH}')
        if not exact:
            if s == 0:
                for x in pk('v_pk_add_f32', DD, TT, '1.0', mod='op_sel_hi:[1,0]'): A(x)
            else:
                for x in pk('v_pk_fma_f32', z, z, DD, ZN): A(x)
                for x in pk('v_pk_fma_f32', DD, DD, TT, DD): A(x)
                for x in pk('v_pk_fma_f32', ZN, ZN, TT, z): A(x)
            if s == 3:
                for j in range(8): A(f'v_rcp_f32 v{DD+j}, v{DD+j}')
                for x in pk('v_pk_fma_f32', DD, ZN, DD, 's[44:45]'): A(x)
        else:
            for x in pk('v_pk_add_f32', TT, TT, '1.0', mod='op_sel_hi:[1,0]'): A(x)
            for j in range(8): A(f'v_rcp_f32 v{TT+j}, v{TT+j}')
            if s == 0:
                for x in pk('v_pk_mul_f32', DD, z, TT): A(x)
            else:
                for x in pk('v_pk_fma_f32', DD, z, TT, DD): A(x)
        if s == 3:
            if nxt:
                A('s_waitcnt vmcnt(3) lgkmcnt(4)')
                for x in mfma_pair(0, ZN): A(x)
            agg_add(A, AA if nxt else QA, DD, exact)

def tid(A, d):
    A(f'v_mbcnt_lo_u32_b32 v{d}, -1, 0'); A(f'v_mbcnt_hi_u32_b32 v{d}, -1, v{d}')
    A('s_lshl_b32 s56, s48, 6'); A(f'v_add_u32 v{d}, s56, v{d}')

def cnt_init(A, t):
    A(f'v_and_b32 v{t}, 63, v0'); A(f's_movk_i32 s56, {NSTR}'); A(f'v_mov_b32 v{t+1}, {ENT}')
    A(f'v_mad_u32_u24 v{t+1}, v{t}, s56, v{t+1}')
    A(f'v_cmp_gt_u32 vcc, {BS}, v{t}'); A(f'v_cndmask_b32 v{t+1}, 0, v{t+1}, vcc')
    A(f's_mov_b32 s56, {QT}'); A(f'v_writelane_b32 v{t+1}, s56, 63')
    A(f'v_lshlrev_b32 v{t}, 2, v{t}')
    A(f'ds_write_b32 v{t}, v{t+1} offset:{CNT}')

def kargs(A):
    A('s_load_dwordx16 s[4:19], s[0:1], 0')
    A('s_load_dwordx2 s[20:21], s[0:1], 64')

def srd_st(A, d, off, n):
    A(f's_add_u32 s{d}, s20, {off}'); A(f's_addc_u32 s{d+1}, s21, 0')
    A('s_cmp_eq_u32 s22, 2'); A(f's_cselect_b32 s{d+2}, 0, {n}'); A(f's_mov_b32 s{d+3}, {W3C}')

def nonce_load(A):
    A('s_mov_b32 s36, s18'); A('s_mov_b32 s37, s19'); A('s_movk_i32 s38, 256')
    A(f'buffer_load_dwordx2 v[14:15], off, s[36:39], 0 {SC}')

def emit(A, opt):
    name = 'gather_scatter__mpnn_edge_mlp__graph_kernel'
    TMO = int(opt.get('tmo', 400))
    A.start(name)
    A(f's_cmp_ge_u32 s2, {NB}'); A('s_cbranch_scc1 k3_end')
    kargs(A)
    stamp(A, opt, 0)
    A('s_and_b32 s3, s2, 7'); A('s_lshl_b32 s3, s3, 5'); A('s_lshr_b32 s23, s2, 3'); A('s_add_u32 s3, s3, s23')
    A('s_mov_b32 s22, 0'); A('s_mov_b32 s23, s3')
    if opt.get('mute'):
        A(f's_and_b32 s56, s2, {int(opt["mute"])}'); A('s_cmp_eq_u32 s56, 5'); A('s_cselect_b32 s22, 2, 0')
    if opt.get('cap'): A(f's_movk_i32 s66, {int(opt["cap"])}')
    A('k3_go:')
    A('v_lshrrev_b32 v1, 6, v0'); A('v_lshlrev_b32 v2, 4, v0'); A('v_readfirstlane_b32 s48, v1')
    A(f's_mov_b32 s39, {W3C}'); A(f's_mov_b32 s43, {W3C}'); A(f's_mov_b32 s47, {W3C}')
    A('s_cmp_lt_u32 s48, 8'); A('s_cbranch_scc1 k3_gemm')
    A('v_subrev_u32 v2, 0x2000, v2')
    A('v_mov_b64 v[4:5], 0'); A('v_mov_b64 v[6:7], 0')
    A('v_and_b32 v52, 0x3f0, v2')
    A(f's_mov_b32 s56, {WU}'); A('s_bitcmp1_b32 s48, 0'); A(f's_cselect_b32 s56, {AG0+24576}, s56')
    A('v_add_u32 v53, s56, v52')
    A('ds_write_b128 v53, v[4:7]')
    for k in range(3): A(f'ds_write_b128 v2, v[4:7] offset:{AG0+8192*k}')
    assert AG0 + 25 * 1024 == CNT
    A('s_cmp_eq_u32 s48, 15'); A('s_cbranch_scc1 k3_help')
    A(f's_mul_i32 s56, s23, {CH*4}')
    A(f's_sub_u32 s57, {E*4}, s56'); A(f's_min_u32 s57, s57, {CH*4}')
    A('v_cmp_gt_u32 s[58:59], s57, v2')
    A('s_lshl_b32 s57, s56, 1')
    A('v_lshlrev_b32 v3, 1, v2')
    A(f's_mov_b32 s38, {E*4}')
    A('s_waitcnt lgkmcnt(0)')
    if not opt.get('cap'): stamp(A, opt, 1)
    A('s_mov_b32 s36, s10'); A('s_mov_b32 s37, s11')
    A('s_mov_b64 exec, s[58:59]')
    A('buffer_load_dwordx4 v[4:7], v2, s[36:39], s56 offen')
    A('s_mov_b64 exec, -1')
    for i in range(4): A(f'v_mov_b64 v[{16+2*i}:{17+2*i}], 0')
    A('s_mov_b32 s40, s8'); A('s_mov_b32 s41, s9'); A(f's_mov_b32 s42, {E*4}')
    A('s_mov_b32 s44, s6'); A('s_mov_b32 s45, s7'); A(f's_mov_b32 s46, {E*8}')
    A('s_mov_b64 exec, s[58:59]')
    A('s_barrier')
    A('buffer_load_dwordx4 v[8:11], v2, s[40:43], s56 offen')
    A('buffer_load_dwordx4 v[16:19], v3, s[44:47], s57 offen')
    A('buffer_load_dwordx4 v[20:23], v3, s[44:47], s57 offen offset:16')
    A(f's_movk_i32 s56, {MAGIC}'); A(f's_movk_i32 s57, -{BS}'); A(f's_mov_b32 s60, {WU}')
    A('v_mov_b32 v12, 12')
    srd_st(A, 28, WS_REC, NB * CHB)
    A('s_waitcnt vmcnt(3)')
    stamp(A, opt, 2)
    for i in range(4): A(f'v_mul_u32_u24 v{32+i}, s56, v{4+i}')
    for i in range(4): A(f'v_lshrrev_b32 v{32+i}, 20, v{32+i}')
    for i in range(4):
        A(f'v_lshl_add_u32 v{36+i}, v{32+i}, 2, s60')
        A(f'ds_add_rtn_u32 v{40+i}, v{36+i}, v12')
    for i in range(4):
        A(f'v_mad_i32_i24 v{4+i}, v{32+i}, s57, v{4+i}')
        A(f'v_bfe_i32 v{32+i}, v{4+i}, 0, 3')
        A(f'v_and_b32 v{32+i}, 15, v{32+i}')
        A(f'v_lshl_or_b32 v{4+i}, v{4+i}, 4, v{32+i}')
    A('s_mov_b64 exec, -1')
    A('v_add_u32 v53, s60, v52')
    A('s_waitcnt lgkmcnt(0)')
    A('s_barrier')
    stamp(A, opt, 3)
    A('ds_read_b128 v[44:47], v53')
    nonce_load(A)
    A('s_waitcnt lgkmcnt(0)')
    A('v_add_u32 v49, v44, v45'); A('v_add_u32 v50, v49, v46'); A('v_add_u32 v48, v50, v47')
    A(f'v_subrev_u32 v51, {STG}, v48')
    for sh in DPPS: A(f'v_add_u32_dpp v48, v48, v48 {sh}')
    A('v_sub_u32 v48, v48, v51')
    A('v_add_u32 v51, v48, v50'); A('v_add_u32 v50, v48, v49'); A('v_add_u32 v49, v48, v44')
    A('ds_write_b128 v53, v[48:51] offset:1024')
    A('s_mov_b64 exec, s[58:59]')
    for i in range(4): A(f'ds_read_b32 v{36+i}, v{36+i} offset:1024')
    A('s_waitcnt vmcnt(3)')
    for i in range(4): A(f'v_lshl_or_b32 v{4+i}, v{4+i}, 20, v{8+i}')
    A('s_waitcnt lgkmcnt(0)')
    for i in range(4):
        A(f'v_add_u32 v{40+i}, v{40+i}, v{36+i}')
        A(f'ds_write_b32 v{40+i}, v{4+i} offset:8')
    A('s_waitcnt vmcnt(1)')
    for i in range(4): A(f'ds_write2_b32 v{40+i}, v{16+2*i}, v{17+2*i} offset1:1')
    A('s_mov_b64 exec, -1')
    A(f'v_add_u32 v53, {STG}, v2')
    A(f's_mul_i32 s56, s23, {CHB}')
    A('s_cmp_eq_u32 s22, 1'); A(f's_cselect_b32 s60, {CHP}, 0'); A('s_add_u32 s56, s56, s60')
    A('s_add_u32 s57, s56, 7168'); A('s_add_u32 s58, s56, 14336')
    A(f's_sub_u32 s60, s60, {STG}')
    A(f'v_cmp_gt_u32 vcc, {CHP-14336}, v2')
    A('s_waitcnt lgkmcnt(0)')
    A('s_barrier')
    stamp(A, opt, 4)
    for k in range(3): A(f'ds_read_b128 {r(64+4*k,4)}, v53 offset:{7168*k}')
    for k in range(3):
        A(f's_waitcnt lgkmcnt({2-k})')
        if k == 2: A('s_mov_b64 exec, vcc')
        A(f'buffer_store_dwordx4 {r(64+4*k,4)}, v2, s[28:31], s{56+k} offen {SC}')
    A('s_mov_b64 exec, -1')
    stamp(A, opt, 5)
    A('s_mov_b32 s56, 0x7fff7fff')
    for i in range(8): A(f'v_and_b32 v{16+i}, s56, v{16+i}')
    for i in range(4): A(f'v_pk_max_u16 v{16+i}, v{16+i}, v{20+i}')
    A('v_pk_max_u16 v16, v16, v17'); A('v_pk_max_u16 v18, v18, v19'); A('v_pk_max_u16 v13, v16, v18')
    A(f'v_max_u32_sdwa v13, v13, v13 {SD} src0_sel:WORD_0 src1_sel:WORD_1')
    for i in range(4):
        A(f'v_add_u32 v{48+i}, s60, v{48+i}'); A(f'v_lshrrev_b32 v{48+i}, 2, v{48+i}')
        A(f'v_lshl_or_b32 v{56+2*i}, v{44+i}, 12, v{48+i}')
    A(f's_movk_i32 s56, {4*C_ARRB}'); A(f's_movk_i32 s59, {4*C_EM}'); A('s_mov_b32 s57, 6'); A('s_mov_b32 s58, 8')
    A('s_branch k3_tail')
    A('k3_help:')
    cnt_init(A, 8)
    A('v_and_b32 v8, 3, v0'); A('v_bfe_u32 v9, v0, 2, 2'); A('v_bfe_u32 v10, v0, 4, 2')
    A('v_lshlrev_b32 v8, 3, v8'); A('v_lshl_or_b32 v8, v9, 6, v8'); A('v_lshl_or_b32 v8, v10, 1, v8')
    A('v_lshlrev_b32 v9, 3, v52')
    A('s_lshr_b32 s57, s2, 3')
    A('s_memrealtime s[58:59]')
    A('s_waitcnt lgkmcnt(0)')
    A('s_mov_b32 s36, s18'); A('s_mov_b32 s37, s19'); A('s_movk_i32 s38, 256')
    A('s_cmp_gt_u32 s2, 7'); A('s_cbranch_scc1 k3_h1')
    A('s_or_b32 s58, s58, 1')
    A('v_mov_b32 v4, s58'); A('v_mov_b32 v5, s59')
    A('s_mov_b64 exec, 1')
    A('buffer_atomic_cmpswap_x2 v[4:7], off, s[36:39], 0 sc1')
    A('s_mov_b64 exec, -1')
    A('k3_h1:')
    A('s_mov_b32 s44, s12'); A('s_mov_b32 s45, s13'); A(f's_mov_b32 s46, {260*256}')
    A('s_mov_b32 s40, s14'); A('s_mov_b32 s41, s15'); A(f's_mov_b32 s42, {256*256}')
    A('s_mov_b32 s56, 65536')
    A('s_barrier')
    for d in range(4):
        A(f'buffer_load_ushort v{16+d}, v8, s[44:47], s56 offen offset:{256*d}')
        A(f'buffer_load_ushort v{20+d}, v8, s[44:47], s56 offen offset:{256*d+32}')
    A('s_lshl_b32 s56, s57, 10'); A('s_add_u32 s56, s56, 32768'); A('s_lshl_b32 s57, s57, 11')
    A('s_mov_b64 exec, 0xff')
    A('buffer_load_dword v24, v9, s[44:47], s56 offen')
    A('s_mov_b64 exec, 0xffff')
    A('buffer_load_dword v25, v9, s[40:43], s57 offen')
    A('s_mov_b64 exec, -1')
    A('s_getpc_b64 s[40:41]')
    A('k3_pc:')
    A('s_mov_b32 s42, code_end-k3_pc')
    A('s_movk_i32 s56, 0x2000')
    A('buffer_load_dword v26, v9, s[40:43], 0 offen')
    A('buffer_load_dword v27, v9, s[40:43], s56 offen')
    A('s_barrier')
    A('s_barrier')
    A(f'buffer_load_dwordx2 v[14:15], off, s[36:39], 0 {SC}')
    A(f's_mov_b32 s56, {NLOG2E}')
    A(f'v_add_u32 v53, {W3S}, v52')
    A('s_waitcnt vmcnt(5)')
    for d in range(8):
        A(f'v_lshlrev_b32 v{16+d}, 16, v{16+d}')
        A(f'v_mul_f32 v{16+d}, s56, v{16+d}')
    for d in range(4): A(f'v_cvt_pk_bf16_f32 v{28+(d^2)}, v{16+2*d}, v{17+2*d}')
    A('ds_write_b128 v53, v[28:31]')
    for d in range(4): A(f'v_max_f32 v{16+d}, |v{16+d}|, |v{20+d}|')
    for sh in DPPS:
        for d in range(4): A(f'v_max_u32_dpp v{16+d}, v{16+d}, v{16+d} {sh}')
    A('v_add_f32 v16, v16, v17'); A('v_add_f32 v18, v18, v19'); A('v_add_f32 v16, v16, v18')
    A(f'v_mul_f32 v13, {f32hex(1.01)}, v16')
    A(f's_movk_i32 s56, {4*C_ARRX}'); A(f's_movk_i32 s59, {4*C_SW}'); A('s_mov_b32 s57, -1')
    A('s_branch k3_tail')
    A('k3_gemm:')
    A('v_and_b32 v11, 0xf0, v0'); A('v_xor_b32 v11, v11, v2')
    A(f's_mul_i32 s56, s23, {BS*256}'); A('s_add_u32 s57, s56, 8192')
    A('s_lshl_b32 s58, s48, 10'); A(f's_add_u32 m0, s58, {XT}')
    A(f's_movk_i32 s59, {BS*16-512}'); A('v_cmp_gt_u32 vcc, s59, v0')
    A(f's_mov_b32 s38, {N*256}')
    A('v_bfe_u32 v10, v0, 2, 4'); A('v_and_b32 v8, 0x30, v2'); A('v_and_b32 v9, 0x20, v0'); A('v_xor_b32 v8, v8, v9')
    A('v_lshl_or_b32 v10, v10, 8, v8')
    A('s_waitcnt lgkmcnt(0)')
    if not opt.get('cap'): stamp(A, opt, 1)
    A('s_mov_b32 s36, s4'); A('s_mov_b32 s37, s5')
    A('buffer_load_dwordx4 v11, s[36:39], s56 offen lds')
    A(f's_add_u32 m0, s58, {XT+8192}')
    A('s_mov_b64 exec, vcc')
    A('buffer_load_dwordx4 v11, s[36:39], s57 offen lds')
    A('s_mov_b64 exec, -1')
    A('s_mov_b32 s44, s12'); A('s_mov_b32 s45, s13'); A(f's_mov_b32 s46, {260*256}')
    A('s_and_b32 s60, s48, 3'); A('s_lshl_b32 s60, s60, 6')
    A('s_lshr_b32 s57, s48, 2'); A('s_lshl_b32 s57, s57, 15'); A('s_add_u32 s57, s57, s60')
    A('s_lshl_b32 s58, s48, 13'); A(f's_add_u32 s58, s58, {QT}'); A('s_mov_b32 m0, s58')
    A('s_barrier')
    def dma_w():
        for i in range(8):
            A('buffer_load_dwordx4 v10, s[44:47], s57 offen lds')
            if i < 7: A('s_add_u32 m0, m0, 1024'); A('s_add_u32 s57, s57, 4096')
    A('s_cmp_gt_u32 s48, 3'); A('s_cbranch_scc1 k3_g1')
    dma_w()
    A('k3_g1:')
    A('v_and_b32 v13, 15, v0'); A('v_bfe_u32 v12, v0, 4, 2')
    A('v_xor_b32 v4, v12, v13'); A('v_lshlrev_b32 v4, 4, v4'); A('v_lshl_add_u32 v4, v13, 8, v4')
    A(f'v_add_u32 v4, {XT}, v4')
    for s in range(1, 4): A(f'v_xor_b32 v{4+s}, {64*s}, v4')
    A('v_and_b32 v8, 3, v0'); A('v_lshlrev_b32 v8, 3, v8'); A('v_and_b32 v9, 16, v0'); A('v_lshl_or_b32 v8, v9, 1, v8')
    A('v_and_b32 v9, 12, v0'); A('v_lshl_or_b32 v8, v9, 4, v8'); A('v_lshl_or_b32 v8, v12, 9, v8')
    A('v_xor_b32 v9, 32, v8'); A('v_add_u32 v8, s58, v8'); A('v_add_u32 v9, s58, v9')
    A('s_cmp_gt_u32 s48, 3'); A('s_cbranch_scc1 k3_g2')
    A('v_lshlrev_b32 v12, 4, v12'); A('v_lshl_add_u32 v12, v13, 8, v12')
    A('s_waitcnt vmcnt(8)')
    stamp(A, opt, 2)
    A('s_barrier')
    A('s_branch k3_g3')
    A('k3_g2:')
    A('v_bfe_i32 v11, v13, 0, 3'); A('v_xor_b32 v12, v12, v11'); A('v_lshlrev_b32 v12, 4, v12'); A('v_xor_b32 v12, s60, v12')
    A('v_and_b32 v12, 0xf0, v12'); A('v_lshl_add_u32 v12, v13, 8, v12')
    A('s_waitcnt vmcnt(0)')
    A('s_barrier')
    dma_w()
    A('k3_g3:')
    stamp(A, opt, 3)
    for rt in range(4):
        for s in range(4): A(f'ds_read_b128 {r(64+16*rt+4*s,4)}, v{4+s} offset:{4096*rt}')
    srd_st(A, 40, WS_P, PROWS * 256)
    A('s_add_u32 s56, s56, s60')
    A(f's_mov_b32 s60, {NLOG2E}'); A('s_mov_b32 s61, s60')
    A('s_barrier')
    stamp(A, opt, 4)
    nonce_load(A)
    for s in range(4):
        A(f's_waitcnt vmcnt({7-2*s})')
        for t in range(2):
            for u in range(2):
                A(f'ds_read_b64_tr_b16 {r(32+8*s+4*t+2*u,2)}, v{8+t} offset:{2048*s+256*u}')
    ACC = [16, 24, 64, 72]
    def mf(rt, t, s):
        a = ACC[rt] + 4 * t
        return f'v_mfma_f32_16x16x32_bf16 {r(a,4)}, {r(32+8*s+4*t,4)}, {r(64+16*rt+4*s,4)}, ' + ('0' if s == 0 else r(a, 4))
    for s in range(4):
        A(f's_waitcnt lgkmcnt({12-4*s})')
        for rt in range(2):
            for t in range(2): A(mf(rt, t, s))
    def post(p):
        o = []
        for rt in (2 * p, 2 * p + 1):
            o += pk('v_pk_mul_f32', ACC[rt], ACC[rt], 's[60:61]')
        for rt in (2 * p, 2 * p + 1):
            o += [f'v_cvt_pk_bf16_f32 v{80+4*rt+j}, v{ACC[rt]+2*j}, v{ACC[rt]+2*j+1}' for j in range(4)]
        return o
    pa = post(0)
    ms = [mf(rt, t, s) for s in range(4) for rt in (2, 3) for t in range(2)]
    for i, m in enumerate(ms):
        A(m)
        if i >= 4:
            for x in pa[(i - 4) * 4 // 3:(i - 3) * 4 // 3]: A(x)
    A('v_and_b32 v10, 0x3f0, v2'); A('v_add_u32 v10, s58, v10')
    A('s_cmp_gt_u32 s48, 3'); A('s_cbranch_scc1 k3_gq')
    for rt in range(4):
        if rt == 2:
            for x in post(1): A(x)
        if rt == 3: A('s_mov_b32 exec_lo, 0x10001'); A('s_mov_b32 exec_hi, 0x10001')
        A(f'buffer_store_dwordx4 {r(80+4*rt,4)}, v12, s[40:43], s56 offen {SC}')
        if rt < 3: A('s_add_u32 s56, s56, 4096')
    A(f's_movk_i32 s56, {4*C_ARRP}'); A(f's_movk_i32 s59, {4*C_PM}'); A('s_mov_b32 s57, 3'); A('s_mov_b32 s58, 0')
    A('s_branch k3_g4')
    A('k3_gq:')
    for rt in range(4):
        if rt == 2:
            for x in post(1)[:8]: A(x)
        if rt == 3: A('s_mov_b32 exec_lo, 0x10001'); A('s_mov_b32 exec_hi, 0x10001')
        for t in range(2): A(f'ds_write_b128 v12, {r(ACC[rt]+4*t,4)} offset:{4096*rt+QH*t}')
    A(f's_movk_i32 s56, {4*C_ARRX}'); A(f's_movk_i32 s59, {4*C_Q}'); A('s_mov_b32 s57, -1')
    A('k3_g4:')
    stamp(A, opt, 5)
    for j in range(4): A(f'v_max3_f32 v16, |v16|, |v{72+2*j}|, |v{73+2*j}|')
    A('s_mov_b64 exec, -1')
    A('v_max3_f32 v13, |v16|, |v17|, |v18|')
    for j in range(6): A(f'v_max3_f32 v13, v13, |v{19+2*j}|, |v{20+2*j}|')
    A('v_max3_f32 v13, v13, |v31|, |v64|')
    for j in range(3): A(f'v_max3_f32 v13, v13, |v{65+2*j}|, |v{66+2*j}|')
    A('v_max_f32 v13, v13, |v71|')
    A('v_lshrrev_b32 v13, 16, v13'); A('v_add_u32 v13, 1, v13')
    A('s_cmp_eq_u32 s48, 0')
    A(f's_cselect_b32 s60, {DUMMYKEY}, 0'); A(f's_cselect_b32 s61, {DUMMYADDR}, 0')
    A('v_mov_b32 v4, s60'); A('v_mov_b32 v5, s61'); A('v_mov_b32 v7, s61')
    A(f's_cselect_b32 s60, s60, {PADIDX}'); A('v_mov_b32 v6, s60')
    for i in range(8): A(f'ds_write_b128 v10, v[4:7] offset:{1024*i}')
    A('k3_tail:')
    for sh in DPPS: A(f'v_max_u32_dpp v13, v13, v13 {sh}')
    A('v_mov_b32 v40, s56'); A('v_mov_b32 v41, 1'); A('v_mov_b32 v42, s59')
    A('s_mov_b32 exec_lo, 0'); A('s_mov_b32 exec_hi, 0x80000000')
    A(f'ds_max_u32 v42, v13 offset:{CNT}')
    srd_st(A, 32, WS_TAB, TAB_BYTES)
    A('s_waitcnt vmcnt(0)')
    stamp(A, opt, 6)
    A(f'ds_add_rtn_u32 v43, v40, v41 offset:{CNT}')
    A(f'ds_read_b32 v44, v42 offset:{CNT}')
    A('s_mov_b64 exec, -1')
    A('v_readfirstlane_b32 s54, v14'); A('v_readfirstlane_b32 s55, v15')
    A('s_cmp_eq_u32 s54, 0'); A('s_cbranch_scc1 k3_nofb')
    A('k3_have:')
    A('s_lshr_b64 s[60:61], s[54:55], 5'); A('s_lshl_b32 s59, s54, 27'); A('s_and_b32 s55, s55, 31')
    for i in range(4): A(f'v_or_b32 v{56+2*i}, s59, v{56+2*i}'); A(f'v_mov_b32 v{57+2*i}, s60')
    A('s_waitcnt lgkmcnt(0)')
    A('v_readlane_b32 s56, v43, 63')
    A('s_cmp_lg_u32 s56, s57'); A('s_cbranch_scc1 k3_nopub')
    A('s_cmp_eq_u32 s58, 0'); A('s_cbranch_scc1 k3_pubf')
    A('s_lshl_b32 s56, s23, 11')
    A(f'buffer_store_dwordx4 v[56:59], v52, s[32:35], s56 offen {SC}')
    A(f'buffer_store_dwordx4 v[60:63], v52, s[32:35], s56 offen offset:1024 {SC}')
    A('k3_pubf:')
    A('v_or_b32 v44, s59, v44'); A('v_mov_b32 v45, s60')
    A('s_lshl_b32 s56, s23, 4'); A('s_add_u32 s56, s56, s58'); A(f's_add_u32 s56, s56, {PF_OFF}')
    A('s_mov_b32 exec_lo, 0'); A('s_mov_b32 exec_hi, 0x80000000')
    A(f'buffer_store_dwordx2 v[44:45], off, s[32:35], s56 {SC}')
    A('s_mov_b64 exec, -1')
    A('k3_nopub:')
    A('s_cmp_eq_u32 s22, 1'); A('s_cbranch_scc1 k3_redo')
    A(f's_mov_b32 s34, {TAB_BYTES}')
    A('v_lshrrev_b32 v103, 2, v0'); A('v_lshlrev_b32 v102, 11, v103')
    A('s_lshr_b32 s52, s3, 2'); A('s_lshl_b32 s52, s52, 4'); A('s_and_b32 s56, s3, 1'); A('s_lshl_b32 s56, s56, 3'); A('s_add_u32 s52, s52, s56')
    A('s_and_b32 s56, s3, 2'); A('s_lshl_b32 s56, s56, 9'); A('s_add_u32 s52, s52, s56')
    A(f'buffer_load_dwordx2 v[126:127], v102, s[32:35], s52 offen {SC}')
    A.srd(28, 20, NB * CHB, off=WS_REC)
    A.srd(24, 20, PROWS, off=WS_P, stride=256)
    A('s_mov_b32 s36, s14'); A('s_mov_b32 s37, s15'); A(f's_mov_b32 s38, {256*256}')
    A('s_mov_b32 s49, 0'); A('s_mov_b32 s50, 0')
    A('s_mov_b32 s62, 0x22221111'); A('s_mov_b32 s63, 0x88884444')
    for k in range(NK): A(f's_mov_b64 {RMASK[k]}, -1')
    A('k3_round:')
    A('v_lshlrev_b32 v2, 4, v0')
    A(f's_movk_i32 s56, {BS*16}'); A('v_cmp_gt_u32 s[60:61], s56, v0')
    A('v_and_b32 v104, 3, v0'); A('v_mul_u32_u24 v104, 3, v104'); A('v_add_u32 v104, s49, v104')
    A(f's_mov_b32 s56, {CHB}'); A('v_mul_u32_u24 v103, s56, v103'); A('v_lshl_add_u32 v103, v104, 2, v103')
    A('v_and_b32 v7, 0xf0, v2')
    for s in range(1, 4): A(f'v_mov_b32 v{WP+1+2*s}, v7')
    A('s_lshl_b32 s56, s48, 8'); A(f's_add_u32 s56, s56, {PF_OFF}'); A('v_add_u32 v105, s56, v7')
    A('v_and_b32 v106, 0x30, v0'); A('v_lshlrev_b32 v106, 1, v106'); A('v_xor_b32 v106, v106, v2')
    A('v_lshlrev_b32 v125, 1, v0'); A('v_and_b32 v125, 0x80, v125'); A('v_xor_b32 v125, v125, v106')
    A('v_and_b32 v107, 0x80, v0'); A('v_xor_b32 v106, v106, v107')
    A('v_lshrrev_b32 v107, 4, v0'); A('v_bfe_i32 v120, v107, 0, 3'); A('v_lshlrev_b32 v120, 4, v120'); A('v_xor_b32 v120, v120, v7')
    A('v_and_b32 v120, 0xf0, v120'); A('v_lshl_add_u32 v120, v107, 8, v120')
    A('v_and_b32 v121, 0xf0, v0'); A('v_xor_b32 v121, v121, v2')
    A('v_and_b32 v122, 0x1c, v0'); A('v_lshlrev_b32 v122, 3, v122'); A('v_and_b32 v107, 3, v0'); A('v_lshl_or_b32 v122, v107, 3, v122')
    A('s_and_b32 s56, s48, 3'); A('s_lshl_b32 s56, s56, 6'); A('v_xor_b32 v122, s56, v122')
    A('v_and_b32 v107, 0x3c, v0'); A('v_lshl_or_b32 v122, v107, 6, v122'); A(f'v_add_u32 v122, {WU}, v122')
    A('s_lshr_b32 s57, s48, 2'); A('s_lshl_b32 s57, s57, 12')
    A('v_lshl_add_u32 v124, v7, 4, s57')
    A('v_and_b32 v123, 0x30, v0'); A('v_xor_b32 v123, v123, v7'); A('v_add_u32 v123, v123, v124')
    A('v_and_b32 v107, 16, v0'); A('v_lshl_add_u32 v124, v107, 1, v124')
    A('v_bfe_u32 v107, v0, 5, 1'); A('v_lshl_add_u32 v124, v107, 4, v124'); A('v_add_u32 v124, s56, v124')
    A('v_and_b32 v107, 3, v0'); A('v_lshlrev_b32 v107, 4, v107')
    A(f'v_mov_b32 v{AR+2}, 0x3f80'); A(f'v_mov_b32 v{AR+3}, 0')
    A(f'v_mov_b64 {r(AR,2)}, 0')
    A('s_mov_b32 exec_lo, 0x00f0000f'); A('s_mov_b32 exec_hi, 0xf0000f00')
    A(f'v_lshlrev_b64 {r(AR,2)}, v107, {r(AR+2,2)}')
    A('s_mov_b64 exec, -1')
    for k in range(1, 5):
        A(f'v_mov_b64 {r(AR+4*k,2)}, {r(AR,2)}'); A(f'v_mov_b64 {r(AR+4*k-2,2)}, 0')
    A('v_and_b32 v34, 0x3f0, v2'); A(f'v_add_u32 v34, {W3S}, v34')
    A('s_lshl_b32 s56, s48, 5'); A(f's_add_u32 s56, s56, {QT}')
    A(f'v_and_b32 v{TPE}, 0xc, v0'); A(f'v_lshl_add_u32 v{TPE}, v{TPE}, 1, s56')
    A(f'v_bfe_u32 v{TPI}, v0, 4, 2'); A(f'v_lshl_add_u32 v{TPI}, v{TPI}, 3, s56')
    A('s_lshl_b32 s58, s48, 10'); A(f's_add_u32 m0, s58, {WU}')
    A(f's_movk_i32 s53, {TMO}')
    A('v_mov_b32 v107, 0')
    A('k3_poll:')
    A('s_waitcnt vmcnt(0)')
    A('v_lshrrev_b64 v[100:101], 27, v[126:127]')
    A('v_cmp_ne_u64 vcc, s[54:55], v[100:101]')
    A('s_and_b64 exec, exec, vcc')
    A('s_cbranch_scc1 k3_poll2')
    A('k3_polled:')
    A('s_mov_b64 exec, -1')
    stamp(A, opt, 7)
    A('v_and_b32 v100, 0x3fff, v126'); A('v_bfe_u32 v101, v126, 14, 13')
    A('v_lshl_add_u32 v102, v100, 2, v103'); A('v_sub_u32 v101, v101, v104')
    for k in range(NK):
        A(f'v_cmp_lt_i32 vcc, {12*k}, v101')
        A(f's_and_b64 {RMASK[k]}, {RMASK[k]}, vcc')
        A(f's_mov_b64 exec, {RMASK[k]}')
        A(f'buffer_load_dwordx3 {r(RECB[k],3)}, v102, s[28:31], 0 offen offset:{48*k} {SC}')
        A('s_mov_b64 exec, -1')
    A(f'v_cmp_lt_i32 vcc, {12*NK}, v101')
    A('s_mov_b64 exec, 0xffff')
    A(f'buffer_load_dwordx4 v[108:111], v105, s[32:35], 0 offen {SC}')
    A('s_mov_b64 exec, -1')
    A('s_cmp_lg_u64 vcc, 0'); A('s_cselect_b32 s51, 1, 0')
    A('v_mov_b32 v100, 16'); A(f'v_mov_b32 v101, {ENT+NSTR}'); A(f's_movk_i32 s57, {NSTR//4}')
    A('s_movk_i32 s56, 0x4000')
    A('s_waitcnt lgkmcnt(0)')
    A('s_barrier')
    A('buffer_load_dwordx4 v106, s[36:39], 0 offen lds')
    A(f's_add_u32 m0, s58, {WU+16384}')
    for k in range(3): A(f'ds_read_b128 {r(RING+6+8*k,4)}, v34')
    A('buffer_load_dwordx4 v106, s[36:39], s56 offen lds')
    A(f'ds_read_b64 {r(RING+30,2)}, v34'); A(f'ds_read_b64 {r(RING,2)}, v34 offset:8')
    A('s_waitcnt vmcnt(3)')
    stamp(A, opt, 8)
    for k in range(NK):
        b = RECB[k]
        A(f's_mov_b64 exec, {RMASK[k]}')
        if k > 1: A(f's_cbranch_execz k3_cnt{k}')
        A(f'v_lshlrev_b32_sdwa v{CADDR[k]}, 2, v{b+2} {SD} src0_sel:DWORD src1_sel:BYTE_3')
        A(f'ds_add_rtn_u32 v{b+3}, v{CADDR[k]}, v100 offset:{CNT}')
        A(f'v_mad_u32_u24 v{LIM[k]}, v{CADDR[k]}, s57, v101')
        if k > 1: A(f'k3_cnt{k}:')
    def pf_check():
        A('v_lshrrev_b64 v[102:103], 27, v[108:109]'); A('v_cmp_ne_u64 s[56:57], s[54:55], v[102:103]')
        A('v_lshrrev_b64 v[102:103], 27, v[110:111]'); A('v_cmp_ne_u64 vcc, s[54:55], v[102:103]')
        A('s_or_b64 vcc, vcc, s[56:57]')
    A('s_mov_b64 exec, 0xffff')
    A('s_waitcnt vmcnt(2)')
    pf_check()
    A('s_mov_b64 exec, vcc')
    A(f'buffer_load_dwordx4 v[108:111], v105, s[32:35], 0 offen {SC}')
    A('s_mov_b32 s56, 0')
    A('s_waitcnt lgkmcnt(0)')
    for k in range(NK):
        b = RECB[k]; f = FM[k]
        A(f's_mov_b64 exec, {RMASK[k]}')
        A(f's_mov_b64 s[{f}:{f+1}], 0')
        A(f's_cbranch_execz k3_qa{k}')
        A(f'v_cmp_lt_u32 vcc, v{b+3}, v{LIM[k]}')
        A(f'v_and_b32 v{CADDR[k]}, 63, v{b+3}')
        A(f's_andn2_b64 {RMASK[k]}, exec, vcc')
        A('s_mov_b64 exec, vcc')
        A(f'ds_write_b96 v{b+3}, {r(b,3)}')
        A(f'v_cmp_eq_u32 s[{f}:{f+1}], 0, v{CADDR[k]}')
        A(f'v_mov_b32 v{CADDR[k]}, s56')
        A(f'v_mbcnt_lo_u32_b32 v{CADDR[k]}, s{f}, v{CADDR[k]}')
        A(f'v_mbcnt_hi_u32_b32 v{CADDR[k]}, s{f+1}, v{CADDR[k]}')
        A(f's_bcnt1_i32_b64 s57, s[{f}:{f+1}]'); A('s_add_u32 s56, s56, s57')
        A(f'k3_qa{k}:')
    A('s_lshl_b32 s56, s56, 3')
    A('s_mov_b64 exec, 1')
    A('v_mov_b32 v101, s56')
    A(f'ds_add_rtn_u32 v101, v107, v101 offset:{CNT+4*C_QT}')
    A(f's_or_b64 vcc, {RMASK[0]}, {RMASK[1]}')
    for k in range(2, NK): A(f's_or_b64 vcc, vcc, {RMASK[k]}')
    A('s_cbranch_scc1 k3_pend')
    for k in range(NK): A(f's_mov_b64 {RMASK[k]}, -1')
    A(f's_add_u32 s49, s49, {12*NK}')
    A('s_cmp_eq_u32 s51, 0'); A('s_cbranch_scc1 k3_noflag')
    A('k3_pend:')
    A(f'ds_write_b32 v107, v{TPI} offset:{CNT+4*C_MORE}')
    A('k3_noflag:')
    A('s_waitcnt lgkmcnt(0)')
    A('v_readfirstlane_b32 s56, v101')
    for k in range(NK):
        b = RECB[k]; f = FM[k]
        A(f's_mov_b64 exec, s[{f}:{f+1}]')
        if k > 1: A(f's_cbranch_execz k3_qw{k}')
        A(f'v_lshl_add_u32 v{CADDR[k]}, v{CADDR[k]}, 3, s56')
        A(f'ds_write_b64 v{CADDR[k]}, {r(b+2,2)}')
        if k > 1: A(f'k3_qw{k}:')
    A('k3_pf:')
    A('s_mov_b64 exec, 0xffff')
    A('s_waitcnt vmcnt(0)')
    pf_check()
    A('s_cbranch_scc1 k3_pf2')
    A('k3_pfd:')
    A(f'ds_max_u32 v107, v108 offset:{CNT+4*C_P}')
    A(f'ds_max_u32 v107, v110 offset:{CNT+4*C_E}')
    A('s_mov_b64 exec, -1')
    A('s_waitcnt lgkmcnt(0)')
    A('s_barrier')
    stamp(A, opt, 9)
    A(f'ds_read_b32 v{VLI}, v{TPI} offset:4')
    A(f'ds_read_b128 v[112:115], v107 offset:{CNT+4*C_P}')
    A(f'ds_read_b32 v{AA}, v{TPI} offset:{512+4}')
    A(f'ds_read_b32 v{VLE}, v{TPE} offset:4')
    A(f'ds_read_u16 v{QA}, v{TPI} offset:2')
    A(f'ds_read_b128 v[116:119], v107 offset:{CNT+4*C_CLAIM}')
    A('s_waitcnt lgkmcnt(5)')
    for s in range(4): A(f'ds_read_u16 v{WP+2*s}, v{VLI} offset:{16*s+8}')
    A('s_waitcnt lgkmcnt(4)')
    A('v_readfirstlane_b32 s56, v113'); A('v_readfirstlane_b32 s53, v115'); A('v_readfirstlane_b32 s51, v114')
    A(f'v_mov_b32 v{VLI}, v{AA}')
    A(f'v_xor_b32 v{QA}, v{QA}, v{WP+1}')
    A('s_cmp_lg_u32 s56, 0'); A('s_cbranch_scc1 k3_steal')
    A('s_waitcnt lgkmcnt(0)')
    for s in range(4): gather(A, s)
    A(f'ds_read_b32 v{VLI}, v{TPI} offset:{2*512+4}')
    A(f'ds_read_b32 v{VLE}, v{TPE} offset:{512+4}')
    stamp(A, opt, 10)
    A('v_and_b32 v108, 0xc00, v122') if False else None
    A(f'v_subrev_u32 v109, {QT}, v{TPI}'); A('v_and_b32 v109, 0x18, v109')
    A('v_lshl_add_u32 v108, v109, 7, v122'); A('v_xor_b32 v109, 32, v108')
    for s in range(4):
        for t in range(2):
            for u in range(2):
                A(f'ds_read_b64_tr_b16 {r(64+8*s+4*t+2*u,2)}, v{108+t} offset:{8192*s+1024*u}')
    A(f'v_add_u32 v96, {XT}, v123')
    for s in (3, 2, 1): A(f'v_xor_b32 v{96+4*s}, {64*s}, v96')
    for s in range(4): A(f'ds_read_b128 {r(96+4*s,4)}, v{96+4*s}')
    A(f's_add_u32 s53, s53, {31 - QT}'); A('s_lshr_b32 s53, s53, 5')
    A('s_sub_u32 s53, s53, s48'); A('s_add_u32 s53, s53, 15'); A('s_lshr_b32 s53, s53, 4')
    A('v_lshlrev_b32 v112, 16, v112'); A('v_lshlrev_b32 v118, 16, v118'); A('v_lshlrev_b32 v119, 16, v119')
    A('v_add_f32 v112, v112, v118'); A('v_fma_f32 v112, v117, v119, v112')
    A('v_readfirstlane_b32 s56, v112')
    A('s_or_b32 s50, s50, s51')
    A(f's_cmp_gt_u32 s56, {f32hex(30.0)}'); A('s_cselect_b32 s50, 1, s50')
    A('s_lshr_b32 s56, s56, 23')
    A('s_cmp_lt_u32 s56, 32'); A('s_cselect_b32 s50, 1, s50')
    A('s_lshl_b32 s56, s56, 23')
    A(f's_add_u32 s44, s56, {(5 << 23) | 0x400000}'); A('s_mov_b32 s45, s44')
    A(f's_sub_u32 s46, s56, {18 << 23}'); A('s_mov_b32 s47, s46')
    A('s_sub_u32 s42, 0, s44'); A('s_subb_u32 s43, 0, s44')
    A(f's_mov_b32 s40, {NLOG2E}'); A('s_mov_b32 s41, s40')
    A(f's_add_u32 m0, s58, {WU}'); A('s_mov_b32 s56, 32768'); A('s_mov_b32 s57, 49152')
    for s in range(4):
        A(f's_waitcnt lgkmcnt({3-s})')
        for t in range(2):
            a = UU + 4 * t
            A(f'v_mfma_f32_16x16x32_bf16 {r(a,4)}, {r(64+8*s+4*t,4)}, {r(96+4*s,4)}, ' + ('0' if s == 0 else r(a, 4)))
    A('s_barrier')
    stamp(A, opt, 11)
    A('v_lshrrev_b32 v74, 8, v120'); A(f'v_mul_u32_u24 v79, {NSTR}, v74'); A('v_lshlrev_b32 v74, 2, v74')
    A(f'ds_read_b32 v74, v74 offset:{CNT}')
    A(f'ds_read_b128 {r(ZC,4)}, v120'); A(f'ds_read_b128 {r(ZC+4,4)}, v120 offset:{QH}')
    A(f'ds_read_b128 {r(QQ,4)}, v{QA}')
    A(f'ds_read_b128 {r(QQ+4,4)}, v{QA} offset:{QH}')
    A('buffer_load_dwordx4 v125, s[36:39], s56 offen lds')
    A(f's_add_u32 m0, s58, {WU+16384}')
    for x in pk('v_pk_mul_f32', UU, UU, 's[40:41]'): A(x)
    A('buffer_load_dwordx4 v125, s[36:39], s57 offen lds')
    A('s_mov_b64 exec, s[60:61]')
    A('s_cbranch_execz k3_pc_done')
    A('s_waitcnt lgkmcnt(2)')
    A('v_sub_u32 v74, v74, v79'); A(f'v_subrev_u32 v74, {ENT}, v74'); A(f'v_min_u32 v74, {NSTR}, v74')
    A('v_add_u32 v78, 48, v74'); A('v_lshrrev_b32 v78, 6, v78')
    A('v_lshlrev_b32 v76, 6, v78'); A('v_sub_u32 v76, v74, v76')
    A('v_cvt_f32_i32 v76, v76'); A(f'v_mul_f32 v76, {f32hex(1/16)}, v76'); A('v_mov_b32 v77, v76')
    for j in range(8): A(f'v_exp_f32 v{TT+j}, v{ZC+j}')
    for x in pk('v_pk_mul_f32', ZC, ZC, 'v[76:77]'): A(x)
    for x in pk('v_pk_add_f32', TT, TT, '1.0', mod='op_sel_hi:[1,0]'): A(x)
    for j in range(8): A(f'v_rcp_f32 v{TT+j}, v{TT+j}')
    A('s_cmp_lg_u32 s50, 0'); A('s_cbranch_scc1 k3_pc_x')
    A('v_add_u32 v78, 1, v78')
    A('v_mad_u64_u32 v[76:77], vcc, v78, s42, 0')
    A('v_mul_lo_u32 v78, v78, s43'); A('v_add_u32 v77, v77, v78')
    for x in pk('v_pk_fma_f32', ZC, ZC, TT, 's[44:45]'): A(x)
    for j in range(4): A(f'v_lshl_add_u64 {r(ZC+2*j,2)}, {r(ZC+2*j,2)}, 0, v[76:77]')
    agg_add(A, 120, ZC, False)
    A('k3_pc_done:')
    A('s_mov_b64 exec, -1')
    A('s_cmp_eq_u32 s53, 0'); A('s_cbranch_scc1 k3_loop_done')
    A('s_waitcnt vmcnt(5) lgkmcnt(0)')
    stamp(A, opt, 12)
    if opt.get('clk'): A('s_memtime s[68:69]'); A('s_mov_b32 s72, s53')
    for x in mfma_pair(0, ZN): A(x)
    A('s_cmp_lg_u32 s50, 0'); A('s_cbranch_scc1 k3_exact')
    A('s_setprio 3')
    def loop(ex):
        nm = 'x' if ex else 'f'
        A('s_cmp_eq_u32 s53, 1'); A(f's_cbranch_scc1 k3_last_{nm}')
        A(f'k3_loop_{nm}:')
        body(A, True, ex)
        A('s_sub_u32 s53, s53, 1')
        if not ex:
            A('s_cmp_gt_u32 s53, 3'); A(f's_cbranch_scc1 k3_loop_{nm}')
            A('s_setprio 2')
            A('s_cmp_gt_u32 s53, 2'); A(f's_cbranch_scc1 k3_loop_{nm}')
            A('s_setprio 1')
        A('s_cmp_gt_u32 s53, 1'); A(f's_cbranch_scc1 k3_loop_{nm}')
        A(f'k3_last_{nm}:')
        if not ex: A('s_setprio 0')
        body(A, False, ex)
    loop(False)
    A('k3_epi:')
    stamp(A, opt, 13)
    if opt.get('clk'): A('s_memtime s[70:71]')
    A('v_xor_b32 v1, 32, v122')
    for s in range(1, 4): A(f'v_xor_b32 v{1+s}, {64*s}, v123')
    A.srd(28, 16, N * 256)
    A(f's_mul_i32 s56, s3, {BS*256}')
    A('s_cmp_gt_u32 s48, 11'); A('s_cselect_b32 s57, 0x10001, -1')
    A('s_waitcnt vmcnt(0) lgkmcnt(0)')
    A('s_barrier')
    stamp(A, opt, 14)
    A(f'ds_read_b128 v[64:67], v120 offset:{AG0}'); A(f'ds_read_b128 v[68:71], v120 offset:{AG1}')
    for s in range(4):
        for t in range(2):
            for u in range(2):
                A(f'ds_read_b64_tr_b16 {r(32+8*s+4*t+2*u,2)}, v{122 if t == 0 else 1} offset:{8192*s+4096*u}')
    A('s_mov_b64 exec, s[60:61]')
    A('s_cbranch_execz k3_p1_done')
    A('s_waitcnt lgkmcnt(15)')
    A('s_cmp_lg_u32 s50, 0'); A('s_cbranch_scc1 k3_p1_x')
    for j in range(8): A(f'v_cvt_f32_i32 v{64+j}, v{64+j}')
    for x in pk('v_pk_mul_f32', 64, 64, 's[46:47]'): A(x)
    A('k3_p1_x:')
    for j in range(4): A(f'v_cvt_pk_bf16_f32 v{72+j}, v{64+2*j}, v{65+2*j}')
    A(f'ds_write_b128 v121, v[72:75] offset:{AGB}')
    A('k3_p1_done:')
    A('s_mov_b64 exec, -1')
    A(f's_mov_b32 s46, {NLN2}'); A('s_mov_b32 s47, s46')
    A('s_waitcnt lgkmcnt(0)')
    A('s_barrier')
    for s in range(4): A(f'ds_read_b128 {r(64+4*s,4)}, v{123 if s == 0 else 1+s} offset:{AGB}')
    for s in range(4):
        A(f's_waitcnt lgkmcnt({3-s})')
        for t in range(2):
            a = UU + 4 * t
            A(f'v_mfma_f32_16x16x32_bf16 {r(a,4)}, {r(32+8*s+4*t,4)}, {r(64+4*s,4)}, {r(a,4)}')
    for j in range(8): A(f'v_exp_f32 v{TT+j}, v{UU+j}')
    for x in pk('v_pk_mul_f32', UU, UU, 's[46:47]'): A(x)
    for x in pk('v_pk_add_f32', TT, TT, '1.0', mod='op_sel_hi:[1,0]'): A(x)
    for j in range(8): A(f'v_rcp_f32 v{TT+j}, v{TT+j}')
    for x in pk('v_pk_mul_f32', UU, UU, TT): A(x)
    for j in range(4): A(f'v_cvt_pk_bf16_f32 v{24+j}, v{UU+2*j}, v{UU+2*j+1}')
    A('v_permlane16_swap_b32 v24, v26'); A('v_permlane16_swap_b32 v25, v27')
    A('s_mov_b32 exec_lo, s57'); A('s_mov_b32 exec_hi, s57')
    A(f'buffer_store_dwordx4 v[24:27], v124, s[28:31], s56 offen {opt.get("out_mods","")}')
    if opt.get('stamp'):
        A('s_mov_b64 exec, -1'); tid(A, 0)
    stamp_end(A, opt, 15, 20, WS_STAMP)
    if opt.get('dbgst'):
        A('s_mov_b64 exec, -1')
        A('s_and_b32 s56, s48, 7'); A('s_cmp_lg_u32 s56, 0'); A('s_cbranch_scc1 k3_end')
        for k in range(2, 16):
            A(f's_sub_u32 s56, s{64+2*k}, s54'); A(f'v_writelane_b32 v1, s56, {k}')
        A('v_mbcnt_lo_u32_b32 v2, -1, 0'); A('v_lshlrev_b32 v2, 2, v2')
        A('s_mov_b32 s36, s18'); A('s_mov_b32 s37, s19'); A('s_movk_i32 s38, 256')
        A('s_mov_b64 exec, 0xfffc')
        A('buffer_atomic_smax v1, v2, s[36:39], 0 offen sc1')
    A('k3_end:')
    A('s_endpgm')
    A('k3_poll2:')
    A(f'buffer_load_dwordx2 v[126:127], v102, s[32:35], s52 offen {SC}')
    A('s_sub_u32 s53, s53, 1'); A('s_cbranch_scc0 k3_poll')
    A('s_waitcnt vmcnt(0)')
    A('v_lshrrev_b32 v126, 11, v102'); A('v_add_u32 v126, 1, v126')
    A(f'ds_write_b32 v107, v126 offset:{CNT+4*C_MISS}')
    A('s_waitcnt lgkmcnt(0)')
    A('v_mov_b32 v126, 0')
    A('s_mov_b32 s53, 0')
    A('s_branch k3_polled')
    A('k3_pf2:')
    A('s_mov_b64 exec, vcc')
    A(f'buffer_load_dwordx4 v[108:111], v105, s[32:35], 0 offen {SC}')
    A('s_sub_u32 s53, s53, 1'); A('s_cbranch_scc0 k3_pf')
    A(f'v_subrev_u32 v102, {PF_OFF-16}, v105'); A('v_lshrrev_b32 v102, 4, v102')
    A(f'ds_write_b32 v107, v102 offset:{CNT+4*C_MISS}')
    A('s_waitcnt vmcnt(0)')
    A('s_branch k3_pfd')
    A('k3_nofb:')
    A('s_memrealtime s[54:55]')
    A('v_mov_b64 v[48:49], 0')
    A('s_waitcnt lgkmcnt(0)')
    A('s_or_b32 s54, s54, 1')
    A('v_mov_b32 v46, s54'); A('v_mov_b32 v47, s55')
    A('s_mov_b64 exec, 1')
    A('buffer_atomic_cmpswap_x2 v[46:49], off, s[36:39], 0 sc0 sc1')
    A('s_waitcnt vmcnt(0)')
    A('s_mov_b64 exec, -1')
    A('v_readfirstlane_b32 s60, v46'); A('v_readfirstlane_b32 s61, v47')
    A('s_cmp_lg_u32 s60, 0'); A('s_cselect_b64 s[54:55], s[60:61], s[54:55]')
    A('s_branch k3_have')
    A('k3_steal:')
    A('s_sub_u32 s23, s56, 1')
    A('s_cmp_lg_u32 s48, 0'); A('s_cbranch_scc1 k3_st1')
    A('s_mov_b32 s36, s18'); A('s_mov_b32 s37, s19'); A('s_movk_i32 s38, 256')
    A('s_lshr_b32 s56, s23, 5'); A('s_lshl_b32 s56, s56, 2'); A('s_lshl_b32 s57, 1, s23')
    A('v_mov_b32 v100, s57')
    A('s_mov_b64 exec, 1')
    A('buffer_atomic_or v100, off, s[36:39], s56 offset:32 sc0 sc1')
    A('s_waitcnt vmcnt(0)')
    A('v_and_b32 v100, s57, v100')
    A(f'ds_write_b32 v107, v100 offset:{CNT+4*C_CLAIM}')
    A('s_mov_b64 exec, -1')
    A('k3_st1:')
    A('s_waitcnt vmcnt(0) lgkmcnt(0)')
    A('s_barrier')
    A(f'ds_read_b32 v100, v107 offset:{CNT+4*C_CLAIM}')
    A('s_waitcnt lgkmcnt(0)')
    A('v_readfirstlane_b32 s56, v100')
    A('s_mov_b32 s22, 1')
    A('s_cmp_eq_u32 s56, 0'); A('s_cbranch_scc1 k3_rst')
    A('k3_redo:')
    A('s_mov_b32 s22, 2'); A('s_mov_b32 s23, s3')
    A('k3_rst:')
    if opt.get('cap'): A('s_sub_u32 s66, s66, 1'); A('s_cbranch_scc1 k3_end')
    tid(A, 0)
    A('s_waitcnt vmcnt(0) lgkmcnt(0)')
    A('s_barrier')
    kargs(A)
    A('s_branch k3_go')
    A('k3_pc_x:')
    for x in pk('v_pk_mul_f32', ZC, ZC, TT): A(x)
    agg_add(A, 120, ZC, True)
    A('s_branch k3_pc_done')
    A('k3_exact:')
    loop(True)
    A('k3_loop_done:')
    A('s_cmp_eq_u32 s51, 0'); A('s_cbranch_scc1 k3_epi')
    if opt.get('cap'): A('s_sub_u32 s66, s66, 1'); A('s_cbranch_scc1 k3_end')
    tid(A, 0)
    A('s_waitcnt vmcnt(0) lgkmcnt(0)')
    A('s_barrier')
    A('v_lshlrev_b32 v2, 4, v0'); A(f'v_add_u32 v2, {QT}, v2')
    A('v_mov_b64 v[64:65], 0'); A(f'v_mov_b32 v66, {PADIDX}'); A('v_mov_b32 v67, 0')
    for k in range(1, 4): A(f'ds_write_b128 v2, v[64:67] offset:{16384*k}')
    A('s_cmp_gt_u32 s48, 7'); A('s_cbranch_scc1 k3_r1')
    A('s_waitcnt lgkmcnt(0)')
    A(f'v_mov_b32 v64, {DUMMYKEY}'); A(f'v_mov_b32 v65, {DUMMYADDR}'); A('v_mov_b64 v[66:67], v[64:65]')
    A('k3_r1:')
    A('ds_write_b128 v2, v[64:67]')
    A('s_cmp_lg_u32 s48, 15'); A('s_cbranch_scc1 k3_r2')
    cnt_init(A, 68)
    A('k3_r2:')
    A('v_lshrrev_b32 v103, 2, v0')
    A('s_branch k3_round')
    return LDS_TOTAL, 128
```

```python
N = 12500; E = 400000
NB = 256; BS = 49; CH = 1564
CHP = 25600
CHB = 2 * CHP
MAGIC = 21400
PROWS = NB * BS
WS_P = 0
WS_TAB = 0x340000
PF_OFF = NB * 2048
TAB_BYTES = PF_OFF + NB * 16
WS_REC = 0x400000
WS_STAMP = 0x1100000
NLOG2E = '0xbfb8aa3b'
NLN2 = '0xbf317218'
DPPS = ('row_shr:1', 'row_shr:2', 'row_shr:4', 'row_shr:8', 'row_bcast:15 row_mask:0xa', 'row_bcast:31 row_mask:0xc')
NSTAMP = 16
assert WS_TAB + TAB_BYTES <= WS_REC and WS_REC + NB * CHB <= WS_STAMP and (PROWS + NB) * 256 <= WS_TAB
```

```python
from asmlib import *
from consts4 import *

Q0 = 0; QH = 12800; AG0 = 25600; AG1 = 38400; BASES = AG0 + CH * 16; CNT = 51712
WU = CNT + 256; XT = WU + 32768; W3S = XT + BS * 256
QT = W3S + 1024; QTB = 8192
ENT = QT + QTB; CAP = 72; NSTR = CAP * 16; ENTB = 57344; LDS_TOTAL = ENT + ENTB
AGB = 0
DUMMYKEY = 49 << 24; DUMMYADDR = ENT + BS * NSTR
PADV = 31.0; PADBF = 0x41f841f8
assert DUMMYADDR + 64 <= ENT + ENTB and ENT % 64 == 0 and NSTR % 64 == 0 and (BS * CAP // 4 + 4) * 8 <= QTB
assert WU % 256 == 0 and XT % 256 == 0 and LDS_TOTAL <= 163840 and BASES + 1024 <= CNT and BASES % 16 == 0
C_MORE, C_MISS, C_ARRB, C_NLO, C_NHI, C_S2, C_S1 = 49, 50, 51, 52, 53, 54, 55
C_SW, C_Q, C_E, C_P, C_EM, C_PM, C_ARRP, C_QT = 56, 57, 58, 59, 60, 61, 62, 63
C_CLAIM = C_EM; C_ARRX = C_S1
BIGF = 0x40000000

TPI, VLI, VLE, QA, AA, TPE = 0, 1, 2, 3, 4, 5
WP = 6
AR = 14; RING = 32
ZN, ZB, ZC, DD, TT, QQ, UU = 64, 72, 80, 88, 96, 104, 112
NK = 6
RECB = [64 + 4 * k for k in range(NK)]; CADDR = [96 + k for k in range(NK)]; LIM = [102 + k for k in range(NK)]
FL, FOFF, LIMV, RADDR, VZ = 88, 92, 93, 94, 95
RM = [4, 6, 8, 10, 12, 96]
RMASK = [f's[{x}:{x+1}]' for x in RM]
FM = [98, 100, 40, 42, 44, 46]
FMASK = [f's[{x}:{x+1}]' for x in FM]
SD = 'dst_sel:DWORD dst_unused:UNUSED_PAD'
AGO = [AG0, AG0 + 8, AG1, AG1 + 8]
SC = 'sc0 sc1'
W3C = '0x00020000'

def r(b, n): return f'v[{b}:{b+n-1}]'

def mfma_pair(step, z):
    e = AR + 2 + 4 * step; b = RING + 8 * step
    return [f'v_mfma_f32_16x16x32_bf16 {r(z,4)}, {r(e,4)}, {r(b,4)}, {r(QQ,4)}',
            f'v_mfma_f32_16x16x32_bf16 {r(z+4,4)}, {r(e-2,4)}, {r(b+4,4)}, {r(QQ+4,4)}']

def gather(A, step):
    A(f'buffer_load_dwordx4 {r(RING+8*step+2,4)}, {r(WP+2*step,2)}, s[24:27], 0 idxen offen {SC}')
    A('s_mov_b64 exec, s[62:63]')
    A(f'ds_read_b64 {r(AR+2+4*step,2)}, v{VLE} offset:{16*step}')
    A('s_mov_b64 exec, -1')
    A(f'ds_read_u16 v{WP+2*step}, v{VLI} offset:{16*step+8}')

def pk(op, d, a, b, c=None, mod=''):
    o = []
    for j in range(4):
        f = lambda x: x if isinstance(x, str) else r(x + 2 * j, 2)
        o.append(f'{op} {f(d)}, {f(a)}, {f(b)}' + (f', {f(c)}' if c is not None else '') + (' ' + mod if mod else ''))
    return o

def agg_add(A, addr, src, exact):
    if exact:
        for j in range(8): A(f'ds_add_f32 v{addr}, v{src+j} offset:{(AG0 if j < 4 else AG1) + 4*(j&3)}')
    else:
        for j in range(4): A(f'ds_add_u64 v{addr}, {r(src+2*j,2)} offset:{AGO[j]}')

def body(A, nxt, exact):
    Z = [ZN, ZB, ZC, ZB]
    na = 8 if exact else 4
    for s in range(4):
        z = Z[s]
        if s == 0:
            A(f's_waitcnt lgkmcnt({na})')
            if nxt:
                A(f'v_mov_b32 v{AA}, v{QA}')
                A(f'ds_read_u16 v{QA}, v{TPI} offset:{512+2}')
        if nxt: gather(A, s)
        if nxt and s == 3:
            A(f'ds_read_b32 v{VLI}, v{TPI} offset:{3*512+4}')
            A(f'ds_read_b32 v{VLE}, v{TPE} offset:{2*512+4}')
            A(f'v_add_u32 v{TPI}, 0x200, v{TPI}')
            A(f'v_add_u32 v{TPE}, 0x200, v{TPE}')
        ex = [f'v_exp_f32 v{TT+j}, v{z+j}' for j in range(8)]
        if s < 3:
            m = mfma_pair(s + 1, Z[s + 1])
            w = f's_waitcnt vmcnt({3 if nxt else 2 - s})'
            if s == 2 and nxt: w += ' lgkmcnt(6)'
            seq = ex[:2] + [w, m[0]] + ex[2:5] + [m[1]] + ex[5:]
        else:
            seq = ex
        for x in seq: A(x)
        if nxt and s == 2:
            A(f'v_xor_b32 v{QA}, v{QA}, v{WP+1}')
            A(f'ds_read_b128 {r(QQ,4)}, v{QA}')
            A(f'ds_read_b128 {r(QQ+4,4)}, v{QA} offset:{QH}')
        if not exact:
            if s == 0:
                for x in pk('v_pk_add_f32', DD, TT, '1.0', mod='op_sel_hi:[1,0]'): A(x)
            else:
                for x in pk('v_pk_fma_f32', z, z, DD, ZN): A(x)
                for x in pk('v_pk_fma_f32', DD, DD, TT, DD): A(x)
                for x in pk('v_pk_fma_f32', ZN, ZN, TT, z): A(x)
            if s == 3:
                for j in range(8): A(f'v_rcp_f32 v{DD+j}, v{DD+j}')
                for x in pk('v_pk_fma_f32', DD, ZN, DD, 's[44:45]'): A(x)
        else:
            for x in pk('v_pk_add_f32', TT, TT, '1.0', mod='op_sel_hi:[1,0]'): A(x)
            for j in range(8): A(f'v_rcp_f32 v{TT+j}, v{TT+j}')
            if s == 0:
                for x in pk('v_pk_mul_f32', DD, z, TT): A(x)
            else:
                for x in pk('v_pk_fma_f32', DD, z, TT, DD): A(x)
        if s == 3:
            if nxt:
                A('s_waitcnt vmcnt(3) lgkmcnt(4)')
                for x in mfma_pair(0, ZN): A(x)
            agg_add(A, AA if nxt else QA, DD, exact)

def tid(A, d):
    A(f'v_mbcnt_lo_u32_b32 v{d}, -1, 0'); A(f'v_mbcnt_hi_u32_b32 v{d}, -1, v{d}')
    A('s_lshl_b32 s56, s48, 6'); A(f'v_add_u32 v{d}, s56, v{d}')

def cnt_init(A, t):
    A(f'v_and_b32 v{t}, 63, v0'); A(f's_movk_i32 s56, {NSTR}'); A(f'v_mov_b32 v{t+1}, {ENT}')
    A(f'v_mad_u32_u24 v{t+1}, v{t}, s56, v{t+1}')
    A(f'v_cmp_gt_u32 vcc, {BS}, v{t}'); A(f'v_cndmask_b32 v{t+1}, 0, v{t+1}, vcc')
    A(f's_mov_b32 s56, {QT}'); A(f'v_writelane_b32 v{t+1}, s56, 63')
    A(f'v_lshlrev_b32 v{t}, 2, v{t}')
    A(f'ds_write_b32 v{t}, v{t+1} offset:{CNT}')

def kargs(A):
    A('s_load_dwordx16 s[4:19], s[0:1], 0')
    A('s_load_dwordx2 s[20:21], s[0:1], 64')

def srd_st(A, d, off, n):
    A(f's_add_u32 s{d}, s20, {off}'); A(f's_addc_u32 s{d+1}, s21, 0')
    A('s_cmp_eq_u32 s22, 2'); A(f's_cselect_b32 s{d+2}, 0, {n}'); A(f's_mov_b32 s{d+3}, {W3C}')

GOPT = {}
def spincap(A):
    if GOPT.get('cap'): A('s_sub_u32 s67, s67, 1'); A('s_cbranch_scc1 k_end')

def spin1(A, nm, vz):
    A(f'{nm}:')
    spincap(A)
    A(f'ds_read_b32 v15, v{vz} offset:{CNT+4*C_S1}')
    A('ds_read_b128 v[44:47], v53')
    A('s_waitcnt lgkmcnt(0)')
    A('v_readfirstlane_b32 s61, v15')
    A('v_add_u32 v49, v44, v45'); A('v_add_u32 v50, v49, v46'); A('v_add_u32 v48, v50, v47'); A('v_add_u32 v51, v50, v47')
    A(f's_cmp_lt_u32 s61, {7*16}'); A(f's_cbranch_scc1 {nm}')
    for sh in DPPS: A(f'v_add_u32_dpp v48, v48, v48 {sh}')

def producer(A, opt):
    st = lambda i: stamp(A, opt, i)
    A('k_go:')
    A('v_lshrrev_b32 v1, 6, v0'); A('v_lshlrev_b32 v2, 4, v0'); A('v_readfirstlane_b32 s48, v1')
    A(f's_mov_b32 s39, {W3C}'); A(f's_mov_b32 s43, {W3C}'); A(f's_mov_b32 s47, {W3C}')
    A('s_cmp_gt_u32 s48, 7'); A('s_cbranch_scc1 k_gemm')
    A('s_setprio 3')
    A('v_mov_b64 v[4:5], 0'); A('v_mov_b64 v[6:7], 0')
    A('v_and_b32 v52, 0x3f0, v2')
    A(f'v_add_u32 v53, {W3S}, v52')
    A('ds_write_b128 v53, v[4:7]')
    A('v_mov_b32 v12, 16')
    A('s_cmp_eq_u32 s48, 7'); A('s_cbranch_scc1 k_help')
    A(f's_mul_i32 s56, s23, {CH*4}')
    A(f's_sub_u32 s57, {E*4}, s56'); A(f's_min_u32 s57, s57, {CH*4}')
    A('v_cmp_gt_u32 s[58:59], s57, v2')
    A('s_lshl_b32 s57, s56, 1')
    A('v_lshlrev_b32 v3, 1, v2')
    for i in range(4): A(f'v_mov_b64 v[{16+4*i}:{17+4*i}], 0')
    A('v_mov_b32 v14, 0')
    A(f's_mov_b32 s38, {E*4}'); A(f's_mov_b32 s42, {E*4}'); A(f's_mov_b32 s46, {E*8}')
    A('s_mov_b64 exec, s[58:59]')
    A('s_waitcnt lgkmcnt(0)')
    if not opt.get('cap'): st(1)
    A('s_mov_b64 s[36:37], s[10:11]')
    A('buffer_load_dwordx4 v[4:7], v2, s[36:39], s56 offen')
    A('s_mov_b64 s[40:41], s[8:9]'); A('s_mov_b64 s[44:45], s[6:7]')
    A('buffer_load_dwordx4 v[8:11], v2, s[40:43], s56 offen')
    for i in range(4): A(f'buffer_load_dwordx2 v[{16+4*i}:{17+4*i}], v3, s[44:47], s57 offen offset:{8*i}')
    A(f's_movk_i32 s56, {MAGIC}'); A(f's_movk_i32 s57, -{BS}'); A(f's_mov_b32 s60, {BASES}')
    srd_st(A, 28, WS_REC, NB * CHB)
    A('s_barrier')
    A('s_waitcnt vmcnt(5)')
    st(2)
    for i in range(4): A(f'v_mul_u32_u24 v{32+i}, s56, v{4+i}')
    for i in range(4): A(f'v_lshrrev_b32 v{32+i}, 20, v{32+i}')
    for i in range(4):
        A(f'v_lshl_add_u32 v{36+i}, v{32+i}, 2, s60')
        A(f'ds_add_rtn_u32 v{40+i}, v{36+i}, v12 offset:{W3S-BASES}')
    A('s_mov_b64 exec, 1')
    A(f'ds_add_u32 v14, v12 offset:{CNT+4*C_S1}')
    A('s_mov_b64 exec, -1')
    for i in range(4):
        A(f'v_mad_i32_i24 v{4+i}, v{32+i}, s57, v{4+i}')
        A(f'v_bfe_i32 v{32+i}, v{4+i}, 0, 3')
        A(f'v_and_b32 v{32+i}, 15, v{32+i}')
        A(f'v_lshl_or_b32 v{4+i}, v{4+i}, 4, v{32+i}')
    spin1(A, 'k_sp1', 14)
    st(3)
    A('v_sub_u32 v48, v48, v51')
    A('v_add_u32 v51, v48, v50'); A('v_add_u32 v50, v48, v49'); A('v_add_u32 v49, v48, v44')
    A(f'ds_write_b128 v52, v[48:51] offset:{BASES}')
    A('s_mov_b64 exec, s[58:59]')
    for i in range(4): A(f'ds_read_b32 v{36+i}, v{36+i}')
    A('s_waitcnt vmcnt(4)')
    for i in range(4): A(f'v_lshl_or_b32 v{18+4*i}, v{4+i}, 20, v{8+i}')
    for i in range(4):
        A(f's_waitcnt vmcnt({3-i}) lgkmcnt(3)')
        A(f'v_add_u32 v{40+i}, v{40+i}, v{36+i}')
        A(f'ds_write_b96 v{40+i}, {r(16+4*i,3)} offset:{AG0}')
    A('s_mov_b64 exec, 1')
    A(f'ds_add_u32 v14, v12 offset:{CNT+4*C_S2}')
    A('s_mov_b64 exec, -1')
    A(f's_mul_i32 s56, s23, {CHB}')
    A('s_cmp_eq_u32 s22, 1'); A(f's_cselect_b32 s60, {CHP}, 0'); A('s_add_u32 s56, s56, s60')
    for k in range(1, 4): A(f's_add_u32 s{56+k}, s56, {7168*k}')
    A('s_mov_b32 s60, 0x7fff7fff')
    A('v_mov_b64 v[4:5], 0'); A('v_mov_b64 v[6:7], 0')
    A('k_sp2:')
    spincap(A)
    A(f'ds_read_b96 v[44:46], v14 offset:{CNT+4*C_NLO}')
    for k in range(4): A(f'ds_read_b96 {r(64+4*k,3)}, v2 offset:{AG0+7168*k}')
    A('s_waitcnt lgkmcnt(4)')
    A('v_readfirstlane_b32 s61, v46')
    for k in range(4): A(f'v_mov_b32 v{67+4*k}, v44')
    A(f's_cmp_lt_u32 s61, {8*16}'); A('s_cbranch_scc1 k_sp2')
    st(4)
    A('s_cmp_gt_u32 s48, 3')
    for k in range(4):
        A(f's_waitcnt lgkmcnt(3)')
        if k == 3: A('s_cbranch_scc1 k_b4')
        A(f'buffer_store_dwordx4 {r(64+4*k,4)}, v2, s[28:31], s{56+k} offen {SC}')
        A(f'ds_write_b128 v2, v[4:7] offset:{AG0+7168*k}')
    A('k_b4:')
    st(5)
    for i in range(8): A(f'v_and_b32 v{32+i}, s60, v{16+4*(i>>1)+(i&1)}')
    for i in range(4): A(f'v_pk_max_u16 v{32+i}, v{32+i}, v{36+i}')
    A('v_pk_max_u16 v32, v32, v33'); A('v_pk_max_u16 v34, v34, v35'); A('v_pk_max_u16 v13, v32, v34')
    A(f'v_max_u32_sdwa v13, v13, v13 {SD} src0_sel:WORD_0 src1_sel:WORD_1')
    A(f'v_mov_b32 v40, {4*C_ARRB}'); A(f'v_mov_b32 v42, {4*C_EM}'); A('s_mov_b32 s51, 6'); A('s_mov_b32 s49, 8')
    A('s_branch k_tail')
    A('k_help:')
    A('s_memrealtime s[58:59]')
    cnt_init(A, 8)
    A('v_and_b32 v8, 3, v0'); A('v_bfe_u32 v9, v0, 2, 2'); A('v_bfe_u32 v10, v0, 4, 2')
    A('v_lshlrev_b32 v8, 3, v8'); A('v_lshl_or_b32 v8, v9, 6, v8'); A('v_lshl_or_b32 v8, v10, 1, v8')
    A('v_lshlrev_b32 v9, 3, v52')
    A('s_getpc_b64 s[40:41]')
    A('k_pc:')
    A('s_mov_b32 s42, code_end-k_pc')
    A('s_movk_i32 s56, 0x2000')
    A('buffer_load_dword v26, v9, s[40:43], 0 offen')
    A('buffer_load_dword v27, v9, s[40:43], s56 offen')
    A('s_movk_i32 s38, 256')
    A('s_waitcnt lgkmcnt(0)')
    A('s_mov_b64 s[36:37], s[18:19]')
    A('s_cmp_gt_u32 s2, 7'); A('s_cbranch_scc1 k_h1')
    A('s_or_b32 s58, s58, 1')
    A('v_mov_b32 v4, s58'); A('v_mov_b32 v5, s59')
    A('s_mov_b64 exec, 1')
    A('buffer_atomic_cmpswap_x2 v[4:7], off, s[36:39], 0 sc1')
    A('s_mov_b64 exec, -1')
    A('k_h1:')
    A('s_mov_b64 s[44:45], s[12:13]'); A(f's_mov_b32 s46, {260*256}')
    A('s_mov_b32 s56, 65536')
    for d in range(4):
        A(f'buffer_load_ushort v{16+d}, v8, s[44:47], s56 offen offset:{256*d}')
        A(f'buffer_load_ushort v{20+d}, v8, s[44:47], s56 offen offset:{256*d+32}')
    A('s_mov_b64 s[40:41], s[14:15]'); A(f's_mov_b32 s42, {256*256}')
    A('s_lshr_b32 s57, s2, 3')
    A('s_lshl_b32 s56, s57, 10'); A('s_add_u32 s56, s56, 32768'); A('s_lshl_b32 s57, s57, 11')
    A('s_mov_b64 exec, 0xff')
    A('buffer_load_dword v24, v9, s[44:47], s56 offen')
    A('s_mov_b64 exec, 0xffff')
    A('buffer_load_dword v25, v9, s[40:43], s57 offen')
    A('s_mov_b64 s[40:41], s[20:21]'); A(f's_mov_b32 s42, {(PROWS+NB)*256}')
    A('s_lshl_b32 s56, s3, 8'); A(f's_add_u32 s56, s56, {PROWS*256}')
    for j in range(4): A(f'v_mov_b32 v{28+j}, {PADBF}')
    A(f'buffer_store_dwordx4 v[28:31], v52, s[40:43], s56 offen {SC}')
    A('s_mov_b64 exec, -1')
    srd_st(A, 32, WS_TAB, TAB_BYTES)
    A('s_cmp_eq_u32 s22, 1'); A(f's_cselect_b32 s57, {CHP}, 0')
    A('s_lshl_b32 s56, s23, 11')
    A('s_barrier')
    A(f'buffer_load_dwordx2 v[10:11], off, s[36:39], 0 {SC}')
    st(2)
    spin1(A, 'k_sp1h', 6)
    st(3)
    A('s_waitcnt vmcnt(0)')
    A('v_readfirstlane_b32 s54, v10'); A('v_readfirstlane_b32 s55, v11')
    A('v_sub_u32 v48, v48, v51')
    A('s_cmp_eq_u32 s54, 0'); A('s_cbranch_scc1 k_nofb')
    A('k_have:')
    A('s_lshr_b64 s[60:61], s[54:55], 5'); A('s_lshl_b32 s59, s54, 27'); A('s_add_u32 s59, s59, s57')
    A('v_add_u32 v48, s59, v48')
    A('v_lshl_add_u32 v56, v44, 12, v48'); A('v_mov_b32 v57, s60')
    A('v_add_u32 v58, v48, v44'); A('v_lshl_add_u32 v58, v45, 12, v58'); A('v_mov_b32 v59, s60')
    A(f'buffer_store_dwordx4 v[56:59], v52, s[32:35], s56 offen {SC}')
    A('v_add_u32 v60, v48, v49'); A('v_lshl_add_u32 v60, v46, 12, v60'); A('v_mov_b32 v61, s60')
    A('v_add_u32 v62, v48, v50'); A('v_lshl_add_u32 v62, v47, 12, v62'); A('v_mov_b32 v63, s60')
    A(f'buffer_store_dwordx4 v[60:63], v52, s[32:35], s56 offen offset:1024 {SC}')
    A('s_mov_b64 exec, 1')
    A(f'ds_write_b64 v6, v[10:11] offset:{CNT+4*C_NLO}')
    A(f'ds_add_u32 v6, v12 offset:{CNT+4*C_S2}')
    A('s_mov_b64 exec, -1')
    st(4)
    A(f's_mov_b32 s56, {NLOG2E}')
    for d in range(8):
        A(f'v_lshlrev_b32 v{16+d}, 16, v{16+d}')
        A(f'v_mul_f32 v{16+d}, s56, v{16+d}')
    for d in range(4): A(f'v_cvt_pk_bf16_f32 v{28+(d^2)}, v{16+2*d}, v{17+2*d}')
    for d in range(4): A(f'v_max_f32 v{16+d}, |v{16+d}|, |v{20+d}|')
    for sh in DPPS:
        for d in range(4): A(f'v_max_u32_dpp v{16+d}, v{16+d}, v{16+d} {sh}')
    A('v_add_f32 v16, v16, v17'); A('v_add_f32 v18, v18, v19'); A('v_add_f32 v16, v16, v18')
    A(f'v_mul_f32 v13, {f32hex(1.01)}, v16')
    A('k_sp2h:')
    spincap(A)
    A(f'ds_read_b32 v15, v6 offset:{CNT+4*C_S2}')
    A('s_waitcnt lgkmcnt(0)')
    A('v_readfirstlane_b32 s61, v15')
    A(f's_cmp_lt_u32 s61, {8*16}'); A('s_cbranch_scc1 k_sp2h')
    A('ds_write_b128 v53, v[28:31]')
    st(5)
    A(f'v_mov_b32 v40, {4*C_ARRX}'); A(f'v_mov_b32 v42, {4*C_SW}'); A('s_mov_b32 s51, -1')
    A('s_branch k_tail')
    A('k_gemm:')
    A('v_subrev_u32 v2, 0x2000, v2')
    A('v_and_b32 v11, 0xf0, v0'); A('v_xor_b32 v11, v11, v2')
    A(f's_mul_i32 s56, s23, {BS*256}'); A('s_add_u32 s57, s56, 8192')
    A('s_lshl_b32 s58, s48, 10'); A(f's_add_u32 m0, s58, {XT-8192}')
    A(f's_movk_i32 s59, {BS*16}'); A('v_cmp_gt_u32 vcc, s59, v0')
    A(f's_mov_b32 s38, {N*256}'); A(f's_mov_b32 s46, {260*256}')
    A('v_bfe_u32 v10, v0, 2, 4'); A('v_and_b32 v8, 0x30, v2'); A('v_and_b32 v9, 0x20, v0'); A('v_xor_b32 v8, v8, v9')
    A('v_lshl_or_b32 v10, v10, 8, v8')
    A('s_and_b32 s60, s48, 3'); A('s_lshl_b32 s60, s60, 6')
    A('s_waitcnt lgkmcnt(0)')
    if not opt.get('cap'): st(1)
    A('s_mov_b64 s[36:37], s[4:5]')
    A('buffer_load_dwordx4 v11, s[36:39], s56 offen lds')
    A(f's_add_u32 m0, s58, {XT}')
    A('s_mov_b64 exec, vcc')
    A('buffer_load_dwordx4 v11, s[36:39], s57 offen lds')
    A('s_mov_b64 exec, -1')
    A('s_mov_b64 s[44:45], s[12:13]')
    A('s_lshl_b32 s58, s48, 13'); A(f's_add_u32 s58, s58, {QT-65536}'); A('s_mov_b32 m0, s58')
    A('s_mov_b32 s57, s60')
    def dma_w():
        for i in range(8):
            A(f'buffer_load_dwordx4 v10, s[44:47], s57 offen offset:{1024*(i&3)} lds')
            if i == 3: A('s_add_u32 m0, m0, 4096'); A(f's_add_u32 s57, s57, {3072+4096}')
            elif i < 7: A('s_add_u32 s57, s57, 3072')
    A('s_cmp_gt_u32 s48, 11'); A('s_cbranch_scc1 k_g1')
    A('s_setprio 2')
    dma_w()
    A('k_g1:')
    A('v_and_b32 v13, 15, v0'); A('v_bfe_u32 v12, v0, 4, 2')
    A('v_xor_b32 v4, v12, v13'); A('v_lshlrev_b32 v4, 4, v4'); A('v_lshl_add_u32 v4, v13, 8, v4')
    A(f'v_add_u32 v4, {XT}, v4')
    for s in range(1, 4): A(f'v_xor_b32 v{4+s}, {64*s}, v4')
    A('v_and_b32 v8, 3, v0'); A('v_lshlrev_b32 v8, 3, v8'); A('v_and_b32 v9, 16, v0'); A('v_lshl_or_b32 v8, v9, 1, v8')
    A('v_and_b32 v9, 12, v0'); A('v_lshl_or_b32 v8, v9, 4, v8'); A('v_lshl_or_b32 v8, v12, 9, v8')
    A('v_xor_b32 v9, 32, v8'); A('v_add_u32 v8, s58, v8'); A('v_add_u32 v9, s58, v9')
    A('v_and_b32 v3, 0x3f0, v2')
    A('s_add_u32 s56, s56, s60')
    def xreads():
        for rt in range(4):
            for s in range(4): A(f'ds_read_b128 {r(64+16*rt+4*s,4)}, v{4+s} offset:{4096*rt}')
    def wreads(extra):
        for s in range(4):
            A(f's_waitcnt vmcnt({extra+6-2*s})')
            for t in range(2):
                for u in range(2):
                    A(f'ds_read_b64_tr_b16 {r(32+8*s+4*t+2*u,2)}, v{8+t} offset:{2048*s+256*u}')
    A('s_cmp_gt_u32 s48, 11'); A('s_cbranch_scc1 k_g2')
    A('v_lshlrev_b32 v12, 4, v12'); A('v_lshl_add_u32 v12, v13, 8, v12')
    srd_st(A, 40, WS_P, PROWS * 256)
    A('s_waitcnt vmcnt(8)')
    st(2)
    A('s_barrier')
    st(3)
    xreads(); wreads(0)
    A('s_branch k_g3')
    A('k_g2:')
    A('v_bfe_i32 v11, v13, 0, 3'); A('v_xor_b32 v12, v12, v11'); A('v_lshlrev_b32 v12, 4, v12'); A('v_xor_b32 v12, s60, v12')
    A('v_and_b32 v12, 0xf0, v12'); A('v_lshl_add_u32 v12, v13, 8, v12')
    A('v_and_b32 v14, 0x30, v0'); A('v_lshlrev_b32 v14, 1, v14'); A('v_xor_b32 v14, v14, v3'); A('v_xor_b32 v15, 0x80, v14')
    A('s_mov_b64 s[40:41], s[14:15]'); A(f's_mov_b32 s42, {256*256}')
    A('s_add_u32 s57, s57, 32768')
    A('s_lshl_b32 s59, s60, 7')
    A('s_waitcnt vmcnt(0)')
    st(2)
    A('s_barrier')
    dma_w()
    A(f's_add_u32 m0, s59, {WU}')
    for i in range(8):
        A(f'buffer_load_dwordx4 v{14+((i>>1)&1)}, s[40:43], s59 offen offset:{1024*(i&3)} lds')
        if i == 3: A('s_add_u32 m0, m0, 4096'); A('s_add_u32 s59, s59, 4096')
    st(3)
    A('s_waitcnt vmcnt(15)')
    xreads(); wreads(8)
    A('k_g3:')
    A(f's_mov_b32 s60, {NLOG2E}'); A('s_mov_b32 s61, s60')
    ACC = [16, 24, 64, 72]
    def mf(rt, t, s):
        a = ACC[rt] + 4 * t
        return f'v_mfma_f32_16x16x32_bf16 {r(a,4)}, {r(32+8*s+4*t,4)}, {r(64+16*rt+4*s,4)}, ' + ('0' if s == 0 else r(a, 4))
    for s in range(4):
        A(f's_waitcnt lgkmcnt({12-4*s})')
        for rt in range(2):
            for t in range(2): A(mf(rt, t, s))
    st(4)
    def post(p):
        o = []
        for rt in (2 * p, 2 * p + 1):
            o += pk('v_pk_mul_f32', ACC[rt], ACC[rt], 's[60:61]')
        for rt in (2 * p, 2 * p + 1):
            o += [f'v_cvt_pk_bf16_f32 v{80+4*rt+j}, v{ACC[rt]+2*j}, v{ACC[rt]+2*j+1}' for j in range(4)]
        return o
    pa = post(0)
    ms = [mf(rt, t, s) for s in range(4) for rt in (2, 3) for t in range(2)]
    for i, m in enumerate(ms):
        A(m)
        if i >= 4:
            for x in pa[(i - 4) * 4 // 3:(i - 3) * 4 // 3]: A(x)
    A('v_add_u32 v10, s58, v3')
    A('s_cmp_gt_u32 s48, 11'); A('s_cbranch_scc1 k_gq')
    for rt in range(4):
        if rt == 2:
            for x in post(1): A(x)
        if rt == 3: A('s_mov_b32 exec_lo, 0x10001'); A('s_mov_b32 exec_hi, 0x10001')
        A(f'buffer_store_dwordx4 {r(80+4*rt,4)}, v12, s[40:43], s56 offen {SC}')
        if rt < 3: A('s_add_u32 s56, s56, 4096')
    A(f's_movk_i32 s56, {4*C_ARRP}'); A(f's_movk_i32 s59, {4*C_PM}'); A('s_mov_b32 s51, 3'); A('s_mov_b32 s49, 0')
    A('s_branch k_g4')
    A('k_gq:')
    for rt in range(4):
        if rt == 2:
            for x in post(1)[:8]: A(x)
        if rt == 3: A('s_mov_b32 exec_lo, 0x10001'); A('s_mov_b32 exec_hi, 0x10001')
        for t in range(2): A(f'ds_write_b128 v12, {r(ACC[rt]+4*t,4)} offset:{4096*rt+QH*t}')
    A(f's_movk_i32 s56, {4*C_ARRX}'); A(f's_movk_i32 s59, {4*C_Q}'); A('s_mov_b32 s51, -1')
    A('k_g4:')
    st(5)
    for j in range(4): A(f'v_max3_f32 v16, |v16|, |v{72+2*j}|, |v{73+2*j}|')
    A('s_mov_b64 exec, -1')
    A('v_max3_f32 v13, |v16|, |v17|, |v18|')
    for j in range(6): A(f'v_max3_f32 v13, v13, |v{19+2*j}|, |v{20+2*j}|')
    A('v_max3_f32 v13, v13, |v31|, |v64|')
    for j in range(3): A(f'v_max3_f32 v13, v13, |v{65+2*j}|, |v{66+2*j}|')
    A('v_max_f32 v13, v13, |v71|')
    A('v_lshrrev_b32 v13, 16, v13'); A('v_add_u32 v13, 1, v13')
    A(f's_add_u32 s57, s3, {PROWS}')
    A('s_cmp_eq_u32 s48, 8')
    A(f's_cselect_b32 s60, {DUMMYKEY}, 0'); A(f's_cselect_b32 s61, {DUMMYADDR}, 0')
    A('v_mov_b32 v4, s60'); A('v_mov_b32 v5, s61'); A('v_mov_b32 v7, s61')
    A('s_cselect_b32 s60, s60, s57'); A('v_mov_b32 v6, s60')
    for i in range(8): A(f'ds_write_b128 v10, v[4:7] offset:{1024*i}')
    A('v_mov_b32 v40, s56'); A('v_mov_b32 v42, s59')


TA, CB, IV, REM, W3A, LN4, C16 = 3, 4, 6, 8, 10, 12, 1
WA = 112

def u_reads(A):
    for s in range(4):
        A(f'ds_read_b128 {r(96+4*s,4)}, v{96+4*s}')
        for t in range(2):
            for u in range(2):
                A(f'ds_read_b64_tr_b16 {r(32+8*s+4*t+2*u,2)}, v{WA+t} offset:{8192*s+1024*u}')

def u_mfma(A):
    for s in range(4):
        A(f's_waitcnt lgkmcnt({15-5*s})')
        for t in range(2):
            a = UU + 4 * t
            A(f'v_mfma_f32_16x16x32_bf16 {r(a,4)}, {r(32+8*s+4*t,4)}, {r(96+4*s,4)}, ' + ('0' if s == 0 else r(a, 4)))
    for k in range(3): A(f'ds_read_b128 {r(RING+6+8*k,4)}, v{W3A}')
    A(f'ds_read_b64 {r(RING+30,2)}, v{W3A}'); A(f'ds_read_b64 {r(RING,2)}, v{W3A} offset:8')

def flag_load(A):
    A(f'buffer_load_dwordx4 {r(FL,4)}, v{FOFF}, s[32:35], 0 offen {SC}')

def rec_load(A, k):
    A(f'buffer_load_dwordx4 {r(RECB[k],4)}, v{RADDR}, s[28:31], 0 offen offset:{64*k} {SC}')

def tag_check(A):
    A('s_waitcnt vmcnt(0)')
    for j in range(3): A(f'v_bitop3_b32 v{108+j}, v{RECB[2*j]+3}, v{RECB[2*j+1]+3}, s54 bitop3:0x7e')
    A('v_or3_b32 v108, v108, v109, v110')
    A('v_cmp_ne_u32 vcc, 0, v108')
    A('s_cbranch_vccnz k_retry')

def pf_check(A):
    A(f'v_lshrrev_b64 v[108:109], 27, {r(FL,2)}'); A('v_cmp_ne_u64 s[56:57], s[54:55], v[108:109]')
    A(f'v_lshrrev_b64 v[108:109], 27, {r(FL+2,2)}'); A('v_cmp_ne_u64 vcc, s[54:55], v[108:109]')
    A('s_or_b64 vcc, vcc, s[56:57]')

def presets(A):
    for k in range(NK): A(f'v_mov_b32 v{RECB[k]+3}, s54')

def entry_dec(A):
    A(f'v_bfe_u32 v{REM}, v126, 16, 11')
    A(f'v_add_u32_sdwa v{RADDR}, v126, v{CB} {SD} src0_sel:WORD_0 src1_sel:DWORD')
    A(f'v_sub_u32 v{REM}, v{REM}, v{IV}')

def first_of_quad(A, k):
    f = FM[k]
    A(f's_mov_b64 s[{f}:{f+1}], 0')
    A(f'v_cmp_eq_u32 s[{f}:{f+1}], 0, v{CADDR[k]}')
    A(f'v_mov_b32 v{CADDR[k]}, s56')
    A(f'v_mbcnt_lo_u32_b32 v{CADDR[k]}, s{f}, v{CADDR[k]}')
    A(f'v_mbcnt_hi_u32_b32 v{CADDR[k]}, s{f+1}, v{CADDR[k]}')
    A(f's_bcnt1_i32_b64 s57, s[{f}:{f+1}]'); A('s_add_u32 s56, s56, s57')

def qt_alloc(A):
    A('s_lshl_b32 s56, s56, 3')
    A('s_mov_b64 exec, 1')
    A('v_mov_b32 v110, s56')
    A(f'ds_add_rtn_u32 v110, v{VZ}, v110 offset:{CNT+4*C_QT}')

def qt_write(A, k):
    A(f'v_lshl_add_u32 v{CADDR[k]}, v{CADDR[k]}, 3, s56')
    A(f'ds_write_b64 v{CADDR[k]}, {r(RECB[k]+2,2)}')

def emit(A, opt):
    name = 'gather_scatter__mpnn_edge_mlp__graph_kernel'
    TMO = int(opt.get('tmo', 400))
    st = lambda i: stamp(A, opt, i)
    A.start(name)
    A(f's_cmp_ge_u32 s2, {NB}'); A('s_cbranch_scc1 k_end')
    kargs(A)
    st(0)
    A('s_and_b32 s3, s2, 7'); A('s_lshl_b32 s3, s3, 5'); A('s_lshr_b32 s23, s2, 3'); A('s_add_u32 s3, s3, s23')
    A('s_mov_b32 s22, 0'); A('s_mov_b32 s23, s3'); A('s_mov_b32 s50, 0')
    if opt.get('slow'): A('s_mov_b32 s50, 1')
    if opt.get('mute'):
        A(f's_and_b32 s56, s2, {int(opt["mute"])}'); A('s_cmp_eq_u32 s56, 5'); A('s_cselect_b32 s22, 2, 0')
    if opt.get('cap'): A(f's_movk_i32 s66, {int(opt["cap"])}'); A('s_mov_b32 s67, 1000000')
    GOPT.update(opt)
    producer(A, opt)
    A('k_tail:')
    dp = [f'v_max_u32_dpp v13, v13, v13 {sh}' for sh in DPPS]
    A('s_setprio 0')
    A(f'v_lshrrev_b32 v{TA}, 2, v0'); A(f'v_mov_b32 v{VZ}, 0')
    A(dp[0])
    A('s_lshr_b32 s52, s3, 2'); A('s_lshl_b32 s52, s52, 4')
    A(dp[1])
    A('s_and_b32 s56, s3, 1'); A('s_lshl_b32 s56, s56, 3'); A('s_add_u32 s52, s52, s56')
    A(dp[2])
    A('s_and_b32 s56, s3, 2'); A('s_lshl_b32 s56, s56, 9'); A('s_add_u32 s52, s52, s56')
    A(dp[3])
    A(f'v_lshlrev_b32 v{TA}, 11, v{TA}')
    A.srd(32, 20, TAB_BYTES, off=WS_TAB)
    A(dp[4])
    A(f'buffer_load_dwordx2 v[126:127], v{TA}, s[32:35], s52 offen {SC}')
    A(f'ds_read_b64 v[46:47], v{VZ} offset:{CNT+4*C_NLO}')
    A(dp[5])
    A('s_mov_b32 exec_lo, 0'); A('s_mov_b32 exec_hi, 0x80000000')
    A(f'ds_max_u32 v42, v13 offset:{CNT}')
    A('s_mov_b64 exec, -1')
    A.srd(28, 20, NB * CHB, off=WS_REC)
    A.srd(24, 20, PROWS + NB, off=WS_P, stride=256)
    A('s_mov_b64 s[36:37], s[14:15]'); A(f's_mov_b32 s38, {256*256}')
    A('s_mov_b32 s62, 0x22221111'); A('s_mov_b32 s63, 0x88884444')
    A('s_cmp_eq_u32 s22, 2'); A('s_cselect_b32 s51, -1, s51')
    A('k_round:')
    A('v_lshlrev_b32 v2, 4, v0')
    A(f's_movk_i32 s56, {BS*16}'); A('v_cmp_gt_u32 s[60:61], s56, v0')
    A(f'v_and_b32 v{IV}, 3, v0'); A(f'v_lshrrev_b32 v{CB}, 2, v0')
    A(f's_mov_b32 s56, {CHB}'); A(f'v_mul_u32_u24 v{CB}, s56, v{CB}'); A(f'v_lshl_add_u32 v{CB}, v{IV}, 4, v{CB}')
    A('v_and_b32 v7, 0xf0, v2')
    for s in range(1, 4): A(f'v_mov_b32 v{WP+1+2*s}, v7')
    A('s_lshl_b32 s56, s48, 8'); A(f's_add_u32 s56, s56, {PF_OFF}'); A(f'v_add_u32 v{FOFF}, s56, v7')
    A('v_and_b32 v107, 0x30, v0'); A('v_lshlrev_b32 v107, 1, v107'); A('v_xor_b32 v107, v107, v2')
    A('v_lshlrev_b32 v125, 1, v0'); A('v_and_b32 v125, 0x80, v125'); A('v_xor_b32 v125, v125, v107')
    A('v_lshrrev_b32 v107, 4, v0'); A('v_bfe_i32 v120, v107, 0, 3'); A('v_lshlrev_b32 v120, 4, v120'); A('v_xor_b32 v120, v120, v7')
    A('v_and_b32 v120, 0xf0, v120'); A('v_lshl_add_u32 v120, v107, 8, v120')
    A('v_and_b32 v121, 0xf0, v0'); A('v_xor_b32 v121, v121, v2')
    A(f'v_and_b32 v122, 0x1c, v0'); A('v_lshlrev_b32 v122, 3, v122'); A(f'v_lshl_or_b32 v122, v{IV}, 3, v122')
    A('s_and_b32 s56, s48, 3'); A('s_lshl_b32 s56, s56, 6'); A('v_xor_b32 v122, s56, v122')
    A('v_and_b32 v107, 0x3c, v0'); A('v_lshl_or_b32 v122, v107, 6, v122'); A(f'v_add_u32 v122, {WU}, v122')
    A('s_lshr_b32 s57, s48, 2'); A('s_lshl_b32 s57, s57, 12')
    A('v_lshl_add_u32 v124, v7, 4, s57')
    A('v_and_b32 v106, 0x30, v0'); A('v_xor_b32 v123, v106, v7'); A('v_add_u32 v123, v123, v124')
    A('v_and_b32 v107, 16, v0'); A('v_lshl_add_u32 v124, v107, 1, v124')
    A('v_bfe_u32 v107, v0, 5, 1'); A('v_lshl_add_u32 v124, v107, 4, v124'); A('v_add_u32 v124, s56, v124')
    A(f'v_lshlrev_b32 v107, 4, v{IV}')
    A(f'v_mov_b32 v{AR+2}, 0x3f80'); A(f'v_mov_b32 v{AR+3}, 0')
    A(f'v_mov_b64 {r(AR,2)}, 0')
    A('s_mov_b32 exec_lo, 0x00f0000f'); A('s_mov_b32 exec_hi, 0xf0000f00')
    A(f'v_lshlrev_b64 {r(AR,2)}, v107, {r(AR+2,2)}')
    A('s_mov_b64 exec, -1')
    for k in range(1, 5):
        A(f'v_mov_b64 {r(AR+4*k,2)}, {r(AR,2)}'); A(f'v_mov_b64 {r(AR+4*k-2,2)}, 0')
    A(f'v_and_b32 v{W3A}, 0x3f0, v2'); A(f'v_lshrrev_b32 v{LN4}, 2, v{W3A}'); A(f'v_add_u32 v{W3A}, {W3S}, v{W3A}')
    A(f's_movk_i32 s56, {NSTR//4}'); A(f'v_mov_b32 v{LIMV}, {ENT+NSTR}'); A(f'v_mad_u32_u24 v{LIMV}, v{LN4}, s56, v{LIMV}')
    A(f's_movk_i32 s56, {4*(C_MISS+1)}'); A(f'v_cmp_gt_u32 vcc, s56, v{LN4}'); A(f'v_cndmask_b32 v{LIMV}, -1, v{LIMV}, vcc')
    A('s_lshl_b32 s56, s48, 5'); A(f's_add_u32 s56, s56, {QT}')
    A(f'v_and_b32 v{TPE}, 0xc, v0'); A(f'v_lshl_add_u32 v{TPE}, v{TPE}, 1, s56')
    A(f'v_bfe_u32 v{TPI}, v0, 4, 2'); A(f'v_lshl_add_u32 v{TPI}, v{TPI}, 3, s56')
    A('s_lshl_b32 s58, s48, 10'); A(f's_add_u32 m0, s58, {WU}')
    A(f's_movk_i32 s53, {TMO}')
    A(f'v_mov_b32 v{C16}, 16')
    A('s_cmp_eq_u32 s50, 3'); A('s_cbranch_scc1 k_slow3')
    A(f'v_lshl_add_u32 v{WA}, v106, 6, v122'); A(f'v_xor_b32 v{WA+1}, 32, v{WA}')
    A(f'v_add_u32 v96, {XT}, v123')
    for s in (3, 2, 1): A(f'v_xor_b32 v{96+4*s}, {64*s}, v96')
    A('v_mov_b32 v41, 1')
    A('k_non:')
    A('s_waitcnt lgkmcnt(0)')
    A('v_readfirstlane_b32 s54, v46'); A('v_readfirstlane_b32 s55, v47')
    A('s_cmp_eq_u32 s54, 0'); A('s_cbranch_scc1 k_non2')
    A('s_lshr_b64 s[56:57], s[54:55], 5'); A('s_lshl_b32 s59, s54, 27'); A('s_and_b32 s55, s55, 31')
    presets(A)
    A('v_mov_b32 v45, s56')
    A('s_lshl_b32 s56, s23, 4'); A('s_add_u32 s56, s56, s49'); A(f's_add_u32 s56, s56, {PF_OFF}')
    A('s_mov_b32 s49, 0')
    A('s_cmp_lt_i32 s51, 0')
    A('s_waitcnt vmcnt(1)')
    st(6)
    A('s_cbranch_scc1 k_nopub')
    A('s_mov_b32 exec_lo, 0'); A('s_mov_b32 exec_hi, 0x80000000')
    A(f'ds_add_rtn_u32 v43, v40, v41 offset:{CNT}')
    A(f'ds_read_b32 v44, v42 offset:{CNT}')
    A('s_waitcnt lgkmcnt(0)')
    A('v_readlane_b32 s57, v43, 63')
    A('v_or_b32 v44, s59, v44')
    A('s_cmp_lg_u32 s57, s51'); A('s_cbranch_scc1 k_nopub')
    A(f'buffer_store_dwordx2 v[44:45], off, s[32:35], s56 {SC}')
    A('s_mov_b64 exec, -1')
    A('s_cmp_eq_u32 s22, 1'); A('s_cbranch_scc1 k_redo')
    late = opt.get('b0late')
    if not late: A('s_barrier')
    A('s_waitcnt vmcnt(1)')
    A('s_branch k_poll1')
    A('k_nopub:')
    A('s_mov_b64 exec, -1')
    A('s_cmp_eq_u32 s22, 1'); A('s_cbranch_scc1 k_redo')
    if not late: A('s_barrier')
    A('k_poll:')
    A('s_waitcnt vmcnt(0)')
    A('k_poll1:')
    A('v_lshrrev_b64 v[44:45], 27, v[126:127]')
    A('v_cmp_ne_u64 vcc, s[54:55], v[44:45]')
    A('s_and_b64 exec, exec, vcc')
    A('s_cbranch_scc1 k_poll2')
    A('k_polled:')
    A('s_mov_b64 exec, -1')
    st(7)
    entry_dec(A)
    A('s_cmp_lg_u32 s50, 0'); A('s_cbranch_scc1 k_slow')
    for k in range(4): A(f'v_cmp_lt_i32 {RMASK[k]}, {4*k}, v{REM}')
    for k in range(3):
        A(f's_mov_b64 exec, {RMASK[k]}')
        rec_load(A, k)
    A(f's_mov_b64 exec, {RMASK[3]}')
    A('s_cbranch_execnz k_ld3')
    A('k_ld3r:')
    A('s_mov_b64 exec, 0xffff')
    flag_load(A)
    A('s_mov_b64 exec, -1')
    if late: A('s_barrier')
    u_reads(A)
    u_mfma(A)
    st(8)
    A('k_chk:')
    tag_check(A)
    A('k_chkd:')
    st(9)
    def cadd(k):
        A(f'ds_add_rtn_u32 v{RECB[k]+3}, v{CADDR[k]}, v{C16} offset:{CNT}')
    def cadr(k):
        A(f'v_lshlrev_b32_sdwa v{CADDR[k]}, 2, v{RECB[k]+2} {SD} src0_sel:DWORD src1_sel:BYTE_3')
    for k in range(3):
        A(f's_mov_b64 exec, {RMASK[k]}')
        cadr(k); cadd(k)
    A(f's_mov_b64 exec, {RMASK[3]}')
    A('s_cbranch_execnz k_rk3')
    A('k_rk3r:')
    A('s_mov_b64 exec, 0xffff')
    pf_check(A)
    A('s_mov_b64 exec, vcc')
    flag_load(A)
    A('s_mov_b32 s56, 0')
    def place(k):
        b = RECB[k]
        A(f's_mov_b64 exec, {RMASK[k]}')
        A(f'v_min_u32 v{b+3}, {LDS_TOTAL-16}, v{b+3}')
        A(f'v_and_b32 v{CADDR[k]}, 63, v{b+3}')
        A(f'ds_write_b96 v{b+3}, {r(b,3)}')
        first_of_quad(A, k)
    A('s_waitcnt lgkmcnt(0)')
    for k in range(3): place(k)
    A(f's_cmp_lg_u64 {RMASK[3]}, 0'); A('s_cbranch_scc1 k_pl3')
    qt_alloc(A)
    A('s_waitcnt lgkmcnt(0)')
    A('v_readfirstlane_b32 s56, v110')
    A('k_pl3r:')
    for k in range(3):
        A(f's_mov_b64 exec, {FMASK[k]}')
        qt_write(A, k)
    A('k_pf:')
    A('s_mov_b64 exec, 0xffff')
    A('s_waitcnt vmcnt(0)')
    pf_check(A)
    A('s_cbranch_scc1 k_pf2')
    A('k_pfd:')
    A(f'ds_max_u32 v{VZ}, v{FL} offset:{CNT+4*C_P}')
    A(f'ds_max_u32 v{VZ}, v{FL+2} offset:{CNT+4*C_E}')
    A('k_ba:')
    A('s_mov_b64 exec, -1')
    A('v_lshrrev_b32 v97, 8, v120'); A(f'v_mul_u32_u24 v98, {NSTR}, v97'); A('v_lshlrev_b32 v97, 2, v97')
    A('s_mov_b32 s51, 0')
    st(10)
    A('s_waitcnt lgkmcnt(0)')
    A('s_barrier')
    st(11)
    A(f'ds_read_b32 v{VLI}, v{TPI} offset:4')
    A(f'ds_read_b32 v96, v{LN4} offset:{CNT}')
    A(f'ds_read_b32 v{AA}, v{TPI} offset:{512+4}')
    A(f'ds_read_b32 v{VLE}, v{TPE} offset:4')
    A(f'ds_read_u16 v{QA}, v{TPI} offset:2')
    A(f'ds_read_b32 v97, v97 offset:{CNT}')
    A('s_waitcnt lgkmcnt(5)')
    for s in range(4): A(f'ds_read_u16 v{WP+2*s}, v{VLI} offset:{16*s+8}')
    A('s_waitcnt lgkmcnt(4)')
    A(f'v_mov_b32 v{VLI}, v{AA}')
    A(f'v_xor_b32 v{QA}, v{QA}, v{WP+1}')
    A(f'v_cmp_gt_u32 vcc, v96, v{LIMV}')
    A(f'v_readlane_b32 s53, v96, {C_QT}')
    A('v_lshlrev_b32 v99, 16, v96')
    A('s_waitcnt lgkmcnt(0)')
    for s in range(4): gather(A, s)
    A(f'ds_read_b128 {r(QQ,4)}, v{QA}')
    A(f'ds_read_b128 {r(QQ+4,4)}, v{QA} offset:{QH}')
    A(f'ds_read_b32 v{VLI}, v{TPI} offset:{2*512+4}')
    A(f'ds_read_b32 v{VLE}, v{TPE} offset:{512+4}')
    A('s_cbranch_vccnz k_abn')
    A('k_abnr:')
    A('s_mov_b32 s56, 32768'); A('s_mov_b32 s57, 49152')
    A('buffer_load_dwordx4 v125, s[36:39], s56 offen lds')
    A(f's_add_u32 m0, s58, {WU+16384}')
    A(f'v_readlane_b32 s40, v99, {C_P}'); A(f'v_readlane_b32 s41, v99, {C_Q}')
    A('buffer_load_dwordx4 v125, s[36:39], s57 offen lds')
    A(f'v_readlane_b32 s42, v99, {C_E}'); A(f'v_readlane_b32 s43, v96, {C_SW}')
    A(f's_add_u32 s53, s53, {31 - QT}'); A('s_lshr_b32 s53, s53, 5')
    A('v_mov_b32 v99, s40'); A('v_fma_f32 v99, s41, 4.0, v99'); A('v_mov_b32 v96, s42'); A('v_fma_f32 v99, s43, v96, v99')
    A('s_sub_u32 s53, s53, s48'); A('s_add_u32 s53, s53, 15'); A('s_lshr_b32 s53, s53, 4')
    A('v_readfirstlane_b32 s56, v99')
    A('v_sub_u32 v97, v97, v98'); A(f'v_subrev_u32 v97, {ENT-48}, v97')
    A(f's_sub_u32 s57, s56, {f32hex(1/64)}')
    A(f's_cmp_gt_u32 s57, {int(f32hex(30.0),16) - int(f32hex(1/64),16)}'); A('s_cselect_b32 s57, 2, 0'); A('s_or_b32 s50, s50, s57')
    A('s_cbranch_scc1 k_pc_x')
    A('s_and_b32 s56, s56, 0x7f800000')
    A(f's_add_u32 s44, s56, {(5 << 23) | 0x400000}'); A('s_mov_b32 s45, s44')
    A(f's_add_u32 s46, s56, {(int(NLN2,16) - (145 << 23)) & 0xffffffff}'); A('s_mov_b32 s47, s46')
    A('s_sub_u32 s42, 0, s44'); A('s_subb_u32 s43, 0, s44')
    A('v_lshrrev_b32 v97, 6, v97')
    A('s_mov_b64 exec, s[60:61]')
    A('v_mad_u64_u32 v[98:99], vcc, v97, s42, 0')
    A('v_mul_lo_u32 v97, v97, s43'); A('v_add_u32 v99, v99, v97')
    for j in range(4): A(f'ds_add_u64 v120, v[98:99] offset:{AGO[j]}')
    A('s_mov_b64 exec, -1')
    A('s_cmp_eq_u32 s53, 0'); A('s_cbranch_scc1 k_epi')
    A('s_waitcnt vmcnt(5) lgkmcnt(0)')
    st(12)
    for x in mfma_pair(0, ZN): A(x)
    A('s_setprio 3')
    def loop(ex):
        nm = 'x' if ex else 'f'
        A('s_cmp_eq_u32 s53, 1'); A(f's_cbranch_scc1 k_last_{nm}')
        A(f'k_loop_{nm}:')
        body(A, True, ex)
        A('s_sub_u32 s53, s53, 1')
        if not ex:
            A('s_cmp_gt_u32 s53, 3'); A(f's_cbranch_scc1 k_loop_{nm}')
            A('s_setprio 2')
            A('s_cmp_gt_u32 s53, 2'); A(f's_cbranch_scc1 k_loop_{nm}')
            A('s_setprio 1')
        A('s_cmp_gt_u32 s53, 1'); A(f's_cbranch_scc1 k_loop_{nm}')
        A(f'k_last_{nm}:')
        if not ex: A('s_setprio 0')
        body(A, False, ex)
    loop(False)
    A('k_epi:')
    st(13)
    A('v_xor_b32 v1, 32, v122')
    for s in range(1, 4): A(f'v_xor_b32 v{1+s}, {64*s}, v123')
    A.srd(28, 16, N * 256)
    A(f's_mul_i32 s56, s3, {BS*256}')
    A('s_cmp_gt_u32 s48, 11'); A('s_cselect_b32 s57, 0x10001, -1')
    A(f's_mov_b32 s44, {NLOG2E}'); A('s_mov_b32 s45, s44')
    A('s_waitcnt vmcnt(0) lgkmcnt(0)')
    A('s_barrier')
    st(14)
    A(f'ds_read_b128 v[64:67], v120 offset:{AG0}'); A(f'ds_read_b128 v[68:71], v120 offset:{AG1}')
    for s in range(4):
        for t in range(2):
            for u in range(2):
                A(f'ds_read_b64_tr_b16 {r(32+8*s+4*t+2*u,2)}, v{122 if t == 0 else 1} offset:{8192*s+4096*u}')
    A('s_mov_b64 exec, s[60:61]')
    A('s_cbranch_execz k_p1_done')
    A('s_waitcnt lgkmcnt(15)')
    A('s_cmp_lg_u32 s50, 0'); A('s_cbranch_scc1 k_p1_x')
    for j in range(8): A(f'v_cvt_f32_i32 v{64+j}, v{64+j}')
    A('k_p1_x:')
    for x in pk('v_pk_mul_f32', 64, 64, 's[46:47]'): A(x)
    for j in range(4): A(f'v_cvt_pk_bf16_f32 v{72+j}, v{64+2*j}, v{65+2*j}')
    A(f'ds_write_b128 v121, v[72:75] offset:{AGB}')
    A('k_p1_done:')
    A('s_mov_b64 exec, -1')
    A('s_waitcnt lgkmcnt(0)')
    A('s_barrier')
    for s in range(4): A(f'ds_read_b128 {r(64+4*s,4)}, v{123 if s == 0 else 1+s} offset:{AGB}')
    for s in range(4):
        A(f's_waitcnt lgkmcnt({3-s})')
        for t in range(2):
            a = UU + 4 * t
            A(f'v_mfma_f32_16x16x32_bf16 {r(a,4)}, {r(32+8*s+4*t,4)}, {r(64+4*s,4)}, {r(a,4)}')
    for x in pk('v_pk_mul_f32', TT, UU, 's[44:45]'): A(x)
    for j in range(8): A(f'v_exp_f32 v{TT+j}, v{TT+j}')
    for x in pk('v_pk_add_f32', TT, TT, '1.0', mod='op_sel_hi:[1,0]'): A(x)
    for j in range(8): A(f'v_rcp_f32 v{TT+j}, v{TT+j}')
    for x in pk('v_pk_mul_f32', UU, UU, TT): A(x)
    for j in range(4): A(f'v_cvt_pk_bf16_f32 v{24+j}, v{UU+2*j}, v{UU+2*j+1}')
    A('v_permlane16_swap_b32 v24, v26'); A('v_permlane16_swap_b32 v25, v27')
    A('s_mov_b32 exec_lo, s57'); A('s_mov_b32 exec_hi, s57')
    A(f'buffer_store_dwordx4 v[24:27], v124, s[28:31], s56 offen {opt.get("out_mods","")}')
    if opt.get('stamp'):
        A('s_mov_b64 exec, -1'); tid(A, 0)
    stamp_end(A, opt, 15, 20, WS_STAMP)
    A('k_end:')
    A('s_endpgm')
    A('k_ld3:')
    for k in (4, 5): A(f'v_cmp_lt_i32 {RMASK[k]}, {4*k}, v{REM}')
    A(f'v_cmp_lt_i32 vcc, {4*NK}, v{REM}')
    rec_load(A, 3)
    for k in (4, 5):
        A(f's_mov_b64 exec, {RMASK[k]}')
        rec_load(A, k)
    A('s_mov_b64 exec, vcc')
    A(f'v_mov_b32 v44, {BIGF}')
    A(f'ds_write_b32 v{VZ}, v44 offset:{CNT+4*C_MORE}')
    A('s_branch k_ld3r')
    A('k_rk3:')
    for k in range(3, NK):
        if k > 3: A(f's_mov_b64 exec, {RMASK[k]}')
        cadr(k); cadd(k)
    A('s_branch k_rk3r')
    A('k_pl3:')
    for k in range(3, NK): place(k)
    qt_alloc(A)
    A('s_waitcnt lgkmcnt(0)')
    A('v_readfirstlane_b32 s56, v110')
    for k in range(3, NK):
        A(f's_mov_b64 exec, {FMASK[k]}')
        qt_write(A, k)
    A('s_branch k_pl3r')
    A('k_poll2:')
    A(f'buffer_load_dwordx2 v[126:127], v{TA}, s[32:35], s52 offen {SC}')
    A('s_sub_u32 s53, s53, 1'); A('s_cbranch_scc0 k_poll')
    A('s_waitcnt vmcnt(0)')
    A(f'v_lshrrev_b32 v126, 11, v{TA}'); A(f'v_add_u32 v126, {BIGF+1}, v126')
    A(f'ds_write_b32 v{VZ}, v126 offset:{CNT+4*C_MISS}')
    A('s_waitcnt lgkmcnt(0)')
    A('v_mov_b32 v126, 0')
    A('s_mov_b32 s53, 0')
    A('s_branch k_polled')
    A('k_retry:')
    A('s_sub_u32 s53, s53, 1'); A('s_cbranch_scc1 k_rtmo')
    for k in range(NK):
        A(f'v_cmp_ne_u32 vcc, s54, v{RECB[k]+3}')
        A('s_mov_b64 exec, vcc')
        rec_load(A, k)
        A('s_mov_b64 exec, -1')
    A('s_cmp_eq_u32 s50, 0'); A('s_cbranch_scc1 k_chk')
    A('s_branch k_schk')
    A('k_rtmo:')
    A('s_mov_b64 exec, vcc')
    tid(A, 108)
    A('v_lshrrev_b32 v108, 2, v108'); A(f'v_add_u32 v108, {BIGF+1}, v108')
    A(f'ds_write_b32 v{VZ}, v108 offset:{CNT+4*C_MISS}')
    A('s_mov_b32 s53, 0')
    A('s_branch k_ba')
    A('k_pf2:')
    A('s_mov_b64 exec, vcc')
    flag_load(A)
    A('s_sub_u32 s53, s53, 1'); A('s_cbranch_scc0 k_pf')
    A(f'v_subrev_u32 v108, {PF_OFF}, v{FOFF}'); A('v_lshrrev_b32 v108, 4, v108'); A(f'v_add_u32 v108, {BIGF+1}, v108')
    A(f'ds_write_b32 v{VZ}, v108 offset:{CNT+4*C_MISS}')
    A('s_waitcnt vmcnt(0)')
    A('s_branch k_ba')
    A('k_non2:')
    spincap(A)
    A(f'ds_read_b64 v[46:47], v{VZ} offset:{CNT+4*C_NLO}')
    A('s_branch k_non')
    A('k_nofb:')
    A('s_memrealtime s[54:55]')
    A('v_mov_b64 v[66:67], 0')
    A('s_waitcnt lgkmcnt(0)')
    A('s_or_b32 s54, s54, 1')
    A('v_mov_b32 v64, s54'); A('v_mov_b32 v65, s55')
    A('s_mov_b64 exec, 1')
    A('buffer_atomic_cmpswap_x2 v[64:67], off, s[36:39], 0 sc0 sc1')
    A('s_waitcnt vmcnt(0)')
    A('s_mov_b64 exec, -1')
    A('v_readfirstlane_b32 s60, v64'); A('v_readfirstlane_b32 s61, v65')
    A('s_cmp_lg_u32 s60, 0'); A('s_cselect_b64 s[54:55], s[60:61], s[54:55]')
    A('v_mov_b32 v10, s54'); A('v_mov_b32 v11, s55')
    A('s_branch k_have')
    A('k_abn:')
    A(f'v_readlane_b32 s56, v96, {C_MISS}'); A(f'v_readlane_b32 s51, v96, {C_MORE}')
    A('s_cmp_lg_u32 s56, 0'); A('s_cbranch_scc1 k_steal')
    A('s_bitcmp1_b32 s50, 0'); A('s_cbranch_scc1 k_abnr')
    A('s_mov_b32 s50, 1')
    A('s_branch k_redo')
    A('k_steal:')
    A(f's_sub_u32 s23, s56, {BIGF+1}')
    A(f'v_mov_b32 v{VZ}, 0')
    A('s_cmp_lg_u32 s48, 0'); A('s_cbranch_scc1 k_st1')
    A('s_mov_b64 s[36:37], s[18:19]'); A('s_movk_i32 s38, 256')
    A('s_lshr_b32 s56, s23, 5'); A('s_lshl_b32 s56, s56, 2'); A('s_lshl_b32 s57, 1, s23')
    A('v_mov_b32 v100, s57')
    A('s_mov_b64 exec, 1')
    A('buffer_atomic_or v100, off, s[36:39], s56 offset:32 sc0 sc1')
    A('s_waitcnt vmcnt(0)')
    A('v_and_b32 v100, s57, v100')
    A(f'ds_write_b32 v{VZ}, v100 offset:{CNT+4*C_CLAIM}')
    A('s_mov_b64 exec, -1')
    A('k_st1:')
    A('s_waitcnt vmcnt(0) lgkmcnt(0)')
    A('s_barrier')
    A(f'ds_read_b32 v100, v{VZ} offset:{CNT+4*C_CLAIM}')
    A('s_waitcnt lgkmcnt(0)')
    A('v_readfirstlane_b32 s56, v100')
    A('s_mov_b32 s22, 1')
    A('s_cmp_eq_u32 s56, 0'); A('s_cbranch_scc1 k_rst')
    A('k_redo:')
    A('s_mov_b32 s22, 2'); A('s_mov_b32 s23, s3')
    A('k_rst:')
    if opt.get('cap'): A('s_sub_u32 s66, s66, 1'); A('s_cbranch_scc1 k_end')
    A('s_and_b32 s50, s50, 1')
    tid(A, 0)
    A('s_waitcnt vmcnt(0) lgkmcnt(0)')
    A('s_barrier')
    kargs(A)
    A('s_branch k_go')
    A('k_slow3:')
    A(f'v_mov_b32 v{VZ}, 0')
    A(f'v_add_u32 v{IV}, s49, v{IV}'); A('s_lshl_b32 s56, s49, 4'); A(f'v_add_u32 v{CB}, s56, v{CB}')
    presets(A)
    entry_dec(A)
    A('s_waitcnt lgkmcnt(0)')
    A('s_barrier')
    A('s_branch k_sl1')
    A('k_slow:')
    for k in range(NK): A(f's_mov_b64 {RMASK[k]}, -1')
    A('s_mov_b64 exec, 0xffff')
    flag_load(A)
    A('s_mov_b64 exec, -1')
    if late: A('s_barrier')
    u_reads(A)
    u_mfma(A)
    A('k_sl1:')
    for k in range(NK):
        A(f'v_cmp_lt_i32 vcc, {4*k}, v{REM}')
        A(f's_and_b64 {RMASK[k]}, {RMASK[k]}, vcc')
        A(f's_mov_b64 exec, {RMASK[k]}')
        rec_load(A, k)
        A('s_mov_b64 exec, -1')
    A(f'v_cmp_lt_i32 vcc, {4*NK}, v{REM}')
    A('s_cmp_lg_u64 vcc, 0'); A('s_cselect_b32 s51, 1, 0')
    A('k_schk:')
    tag_check(A)
    A(f'v_mov_b32 v110, {ENT+NSTR}'); A(f's_movk_i32 s57, {NSTR//4}')
    for k in range(NK):
        A(f's_mov_b64 exec, {RMASK[k]}')
        cadr(k); cadd(k)
        A(f'v_mad_u32_u24 v{LIM[k]}, v{CADDR[k]}, s57, v110')
    A('s_mov_b32 s56, 0')
    A('s_waitcnt lgkmcnt(0)')
    for k in range(NK):
        b = RECB[k]
        A(f's_mov_b64 exec, {RMASK[k]}')
        A(f'v_cmp_lt_u32 vcc, v{b+3}, v{LIM[k]}')
        A(f'v_and_b32 v{CADDR[k]}, 63, v{b+3}')
        A(f's_andn2_b64 {RMASK[k]}, exec, vcc')
        A('s_and_b64 exec, exec, vcc')
        A(f'ds_write_b96 v{b+3}, {r(b,3)}')
        first_of_quad(A, k)
    qt_alloc(A)
    A(f's_or_b64 vcc, {RMASK[0]}, {RMASK[1]}')
    for k in range(2, NK): A(f's_or_b64 vcc, vcc, {RMASK[k]}')
    A('s_cbranch_scc1 k_pend')
    for k in range(NK): A(f's_mov_b64 {RMASK[k]}, -1')
    A(f's_add_u32 s49, s49, {4*NK}')
    A('s_cmp_eq_u32 s51, 0'); A('s_cbranch_scc1 k_noflag')
    A('k_pend:')
    A(f'v_mov_b32 v109, {BIGF}')
    A(f'ds_write_b32 v{VZ}, v109 offset:{CNT+4*C_MORE}')
    A('k_noflag:')
    A('s_waitcnt lgkmcnt(0)')
    A('v_readfirstlane_b32 s56, v110')
    for k in range(NK):
        A(f's_mov_b64 exec, {FMASK[k]}')
        qt_write(A, k)
    A('s_cmp_eq_u32 s50, 3'); A('s_cbranch_scc1 k_ba')
    A('s_branch k_pf')
    A('k_pc_x:')
    A(f'ds_read_b128 {r(ZC,4)}, v120'); A(f'ds_read_b128 {r(ZC+4,4)}, v120 offset:{QH}')
    A(f's_mov_b32 s46, {NLN2}'); A('s_mov_b32 s47, s46')
    A(f's_mov_b32 s44, {f32hex(PADV)}'); A('s_mov_b32 s45, s44')
    A('s_mov_b64 exec, s[60:61]')
    A(f'v_min_u32 v97, {NSTR+48}, v97')
    A('v_and_b32 v97, 48, v97'); A('v_subrev_u32 v97, 48, v97')
    A('v_cvt_f32_i32 v76, v97'); A(f'v_mul_f32 v76, {f32hex(1/16)}, v76'); A('v_mov_b32 v77, v76')
    A('s_waitcnt lgkmcnt(0)')
    for x in pk('v_pk_add_f32', ZC, ZC, 's[44:45]'): A(x)
    for j in range(8): A(f'v_exp_f32 v{TT+j}, v{ZC+j}')
    for x in pk('v_pk_mul_f32', ZC, ZC, 'v[76:77]'): A(x)
    for x in pk('v_pk_add_f32', TT, TT, '1.0', mod='op_sel_hi:[1,0]'): A(x)
    for j in range(8): A(f'v_rcp_f32 v{TT+j}, v{TT+j}')
    for x in pk('v_pk_mul_f32', ZC, ZC, TT): A(x)
    agg_add(A, 120, ZC, True)
    A('s_mov_b64 exec, -1')
    A('s_cmp_eq_u32 s53, 0'); A('s_cbranch_scc1 k_loop_done')
    A('s_waitcnt vmcnt(5) lgkmcnt(0)')
    for x in mfma_pair(0, ZN): A(x)
    loop(True)
    A('k_loop_done:')
    A('s_cmp_eq_u32 s51, 0'); A('s_cbranch_scc1 k_epi')
    if opt.get('cap'): A('s_sub_u32 s66, s66, 1'); A('s_cbranch_scc1 k_end')
    tid(A, 0)
    A('s_mov_b32 s50, 3')
    A('s_waitcnt vmcnt(0) lgkmcnt(0)')
    A('s_barrier')
    A('v_lshlrev_b32 v2, 4, v0'); A(f'v_add_u32 v2, {QT}, v2')
    A(f's_add_u32 s56, s3, {PROWS}')
    A('v_mov_b64 v[64:65], 0'); A('v_mov_b32 v66, s56'); A('v_mov_b32 v67, 0')
    for k in range(1, 4): A(f'ds_write_b128 v2, v[64:67] offset:{16384*k}')
    A('s_cmp_gt_u32 s48, 7'); A('s_cbranch_scc1 k_r1')
    A('s_waitcnt lgkmcnt(0)')
    A(f'v_mov_b32 v64, {DUMMYKEY}'); A(f'v_mov_b32 v65, {DUMMYADDR}'); A('v_mov_b64 v[66:67], v[64:65]')
    A('k_r1:')
    A('ds_write_b128 v2, v[64:67]')
    A('s_cmp_lg_u32 s48, 15'); A('s_cbranch_scc1 k_round')
    cnt_init(A, 68)
    A('s_branch k_round')
    return LDS_TOTAL, 128
```

```python
import sys
from asmlib import *
from consts4 import *
import k4
opt = {}
for a in sys.argv[2:]:
    k, _, v = a.partition('=')
    opt[k] = v.replace('+', ' ') if v else True
hdr = open('gather_scatter__mpnn_edge_mlp__graph.s.ref').read().split('; Override launch')[0]
A = Asm()
lds, vg = k4.emit(A, opt)
top = [hdr.rstrip(), f'; @launch grid=({NB},1,1) block=(1024,1,1) lds={lds}']
A('code_end:')
body, n = pad_hazards(A.o)
sys.stderr.write(f'nop states inserted: {n}, lines {len(body)}\n')
out = top + ['.amdgcn_target "amdgcn-amd-amdhsa--gfx950"', '.text'] + body + ['.section .rodata,"a"', kdesc('gather_scatter__mpnn_edge_mlp__graph_kernel', vg)]
open(sys.argv[1], 'w').write('\n'.join(out) + '\n')
```
